```python
import torch

def _softmax(x, axis=-1):
    return torch.softmax(x, dim=axis)
def _gelu(x):
    return torch.nn.functional.gelu(x, approximate="tanh")
def _silu(x):
    return torch.nn.functional.silu(x)
def _sigmoid(x):
    return torch.sigmoid(x)
def _layernorm(x, axis=-1, eps=1e-5):
    m = x.mean(dim=axis, keepdim=True)
    v = x.var(dim=axis, keepdim=True, unbiased=False)
    return (x - m) / torch.sqrt(v + eps)
def _scatter_add(tgt, idx, src, axis=0):
    return tgt.clone().index_add_(axis, idx, src)
def _segment_sum(src, seg, n):
    out = torch.zeros((n,) + src.shape[1:], dtype=src.dtype)
    return out.index_add_(0, seg, src)
def _pad(x, pw):
    flat = tuple(v for pair in reversed(pw) for v in pair)
    return torch.nn.functional.pad(x, flat)

kernel_name = 'standalone__depthwise_separable__vision'

def setup_inputs():

    _w = (lambda a: (lambda t: t.to(torch.bfloat16) if t.is_floating_point() else t)(torch.as_tensor(a)))
    H = W = 512
    C = 96
    k = 1
    return {
        "x": _w((lambda *s: torch.randn(*s, dtype=torch.bfloat16) * 0.05)(1, H, W, C)),
        "dw": _w((lambda *s: torch.randn(*s, dtype=torch.bfloat16) * 0.05)(k, k, C)),
        "pw": _w((lambda *s: torch.randn(*s, dtype=torch.bfloat16) * 0.05)(C, C)),
    }

def reference(x, dw, pw):
    B, H, W, C = x.shape
    k = dw.shape[0]
    pad = k // 2
    xp = _pad(x, ((0,0),(pad,pad),(pad,pad),(0,0)))
    out = torch.zeros_like(x)
    for i in range(k):
        for j in range(k):
            out = out + xp[:, i:i+H, j:j+W, :] * dw[i, j][None, None, None, :]
    return torch.einsum('bhwc,cd->bhwd', out, pw)
```

```python
import sys, argparse

HEADER = """; Kernarg layout for this problem (48 bytes, ptrs only, base s[0:1]):
; Override launch geometry by editing the next line (default: block=256,
"""
NAME = "standalone__depthwise_separable__vision_kernel"
TOTAL = 512*512*192
TILE = 3072

def gen(W=8, NWG=256, D=5, mapping="sweep", ldf="", stf="", lds_min=0, stamps=False):
    NW = W*NWG
    NT = TOTAL//TILE
    assert NT % NW == 0
    T = NT//NW
    D = min(D, T)
    OUTA = max(W*TILE, 18432)
    PWN = -(-18//W)
    OUTA = max(OUTA, W*PWN*1024)
    lds = OUTA + W*D*TILE
    lds = max(lds, lds_min)
    assert lds <= 163840, lds
    o = []
    e = o.append
    e(HEADER + f"; @launch grid=({NWG},1,1) block=({W*64},1,1) lds={lds}")
    e('.amdgcn_target "amdgcn-amd-amdhsa--gfx950"')
    e(".text")
    e(f".globl {NAME}")
    e(".p2align 8")
    e(f".type {NAME},@function")
    e(f"{NAME}:")
    vD0, vD1, vD2, vBR, vBB, vOW, vOR0, vOR1, vOR2, vT = 1,2,3,4,5,6,7,8,9,10
    B = 12; ACC = 24; O = 48; R = 60; DW = 72; TMP = 96; WT = 100
    NV = WT + 72
    sWave, sLd, sSt, sI, sSlot, sMask, sRingLo, sRingHi, sT = 28,29,30,31,32,34,35,36,37
    e(f"  s_cmp_ge_u32 s2, {NWG}")
    e(f"  s_cbranch_scc1 L_end")
    def stamp(j, dyn=None):
        if not stamps: return
        e(f"  s_memrealtime s[48:49]")
        if dyn is not None:
            e(f"  s_add_u32 s50, s{dyn}, {j}")
            e(f"  s_mov_b32 s51, m0")
            e(f"  s_mov_b32 m0, s50")
        e(f"  s_waitcnt lgkmcnt(0)")
        if dyn is not None:
            e(f"  v_writelane_b32 v11, s48, m0")
            e(f"  s_mov_b32 m0, s51")
        else:
            e(f"  v_writelane_b32 v11, s48, {j}")
    if stamps: e("  v_mov_b32 v11, 0")
    stamp(0)
    e(f"  s_load_dwordx8 s[4:11], s[0:1], 0")
    if stamps: e(f"  s_load_dwordx2 s[44:45], s[0:1], 40")
    e(f"  v_lshrrev_b32 v{vT}, 6, v0")
    e(f"  v_and_b32 v0, 63, v0                 ; lane")
    e(f"  v_readfirstlane_b32 s{sWave}, v{vT}")
    e(f"  v_lshlrev_b32 v{vD0}, 4, v0          ; l*16")
    e(f"  v_xor_b32 v{vD2}, 32, v{vD0}         ; (l^2)*16")
    e(f"  v_and_b32 v{vT}, 32, v0")
    e(f"  v_xor_b32 v{vD1}, v{vT}, v{vD0}      ; l>=32 ? (l^2)*16 : l*16")
    e(f"  v_and_b32 v{vT}, 48, v0              ; g*16")
    if mapping == "sweep":
        e(f"  s_mul_i32 s{sLd}, s2, {W}")
        e(f"  s_add_u32 s{sLd}, s{sLd}, s{sWave}")
        e(f"  s_mul_i32 s{sLd}, s{sLd}, {TILE}")
        step = NW*TILE
    elif mapping == "block":
        e(f"  s_mul_i32 s{sLd}, s2, {W}")
        e(f"  s_add_u32 s{sLd}, s{sLd}, s{sWave}")
        e(f"  s_mul_i32 s{sLd}, s{sLd}, {TILE*T}")
        step = TILE
    elif mapping == "wgblock":
        e(f"  s_mul_i32 s{sLd}, s2, {W*T}")
        e(f"  s_add_u32 s{sLd}, s{sLd}, s{sWave}")
        e(f"  s_mul_i32 s{sLd}, s{sLd}, {TILE}")
        step = W*TILE
    else:
        raise ValueError
    e(f"  s_mov_b32 s{sSt}, s{sLd}")
    e(f"  s_mul_i32 s{sRingLo}, s{sWave}, {D*TILE}")
    e(f"  s_add_u32 s{sRingLo}, s{sRingLo}, {OUTA}")
    e(f"  s_mul_i32 s{sT}, s{sWave}, {PWN*1024}")
    e(f"  s_mov_b32 m0, s{sT}")
    e(f"  s_mov_b32 s14, {TOTAL}")
    e(f"  s_mov_b32 s15, 0x20000")
    e(f"  s_mov_b32 s22, 18432")
    e(f"  s_mov_b32 s23, 0x20000")
    e(f"  s_mov_b32 s26, 192")
    e(f"  s_mov_b32 s27, 0x20000")
    e(f"  s_waitcnt lgkmcnt(0)")
    stamp(1)
    e(f"  s_mov_b32 s20, s8")
    e(f"  s_mov_b32 s21, s9")
    e(f"  s_mov_b32 s24, s6")
    e(f"  s_mov_b32 s25, s7")
    e(f"  s_mov_b32 s12, s4")
    e(f"  s_mov_b32 s13, s5")
    assert PWN <= 4
    for k in range(PWN):
        e(f"  buffer_load_dwordx4 v{vD0}, s[20:23], s{sT} offen offset:{k*1024} lds")
    for s in range(3):
        e(f"  buffer_load_dwordx4 v[{B+4*s}:{B+4*s+3}], v{vT}, s[24:27], 0 offen offset:{s*64}")
    e(f"  s_mov_b32 s{sSlot}, s{sRingLo}")
    for k in range(D):
        e(f"  s_mov_b32 m0, s{sSlot}")
        if k < D-1:
            e(f"  s_add_u32 s{sSlot}, s{sSlot}, {TILE}")
        else:
            e(f"  s_add_u32 s{sRingHi}, s{sSlot}, {TILE}")
        for q, vd in enumerate((vD0, vD1, vD2)):
            e(f"  buffer_load_dwordx4 v{vd}, s[12:15], s{sLd} offen offset:{q*1024} {ldf} lds")
        e(f"  s_add_u32 s{sLd}, s{sLd}, {step}")
    e(f"  s_mov_b32 s{sSlot}, s{sRingLo}")
    e(f"  s_mov_b32 s16, s10")
    e(f"  s_mov_b32 s17, s11")
    e(f"  s_mov_b32 s18, {TOTAL}")
    e(f"  s_mov_b32 s19, 0x20000")
    e(f"  s_mov_b32 s{sMask}, 0xffff0000")
    e(f"  s_mov_b32 s{sI}, 0")
    t0, t1, t2 = TMP, TMP+1, TMP+2
    e(f"  v_and_b32 v{t0}, 15, v0              ; j")
    e(f"  v_mul_u32_u24 v{t1}, 192, v{t0}      ; j*192")
    e(f"  v_and_b32 v{t2}, 8, v0")
    e(f"  v_lshlrev_b32 v{t2}, 2, v{t2}        ; f(j)*16 = (j&8)<<2")
    e(f"  v_xor_b32 v{t2}, v{t2}, v{vT}        ; (g^f)*16")
    e(f"  v_add_u32 v{vBB}, v{t1}, v{t2}")
    e(f"  v_and_b32 v{t2}, 6, v0")
    e(f"  v_lshlrev_b32 v{t2}, 3, v{t2}        ; fo(j)*16 = ((j>>1)&3)<<4")
    e(f"  v_xor_b32 v{t2}, v{t2}, v{vT}")
    e(f"  v_add_u32 v{vOW}, v{t1}, v{t2}")
    e(f"  s_mul_i32 s{sT}, s{sWave}, {TILE}")
    e(f"  v_add_u32 v{vOW}, s{sT}, v{vOW}")
    for q, vr in enumerate((vOR0, vOR1, vOR2)):
        e(f"  v_add_u32 v{t0}, {q*64}, v0          ; P")
        e(f"  v_mul_u32_u24 v{t1}, 171, v{t0}")
        e(f"  v_lshrrev_b32 v{t1}, 12, v{t1}       ; (P/12)>>1")
        e(f"  v_and_b32 v{t1}, 3, v{t1}")
        e(f"  v_xor_b32 v{t0}, v{t0}, v{t1}")
        e(f"  v_lshlrev_b32 v{t0}, 4, v{t0}")
        e(f"  v_add_u32 v{vr}, s{sT}, v{t0}")
    for P in range(192):
        assert (P*171) >> 11 == P//12
    e(f"  v_lshrrev_b32 v{t0}, 4, v0           ; g")
    e(f"  v_lshlrev_b32 v{t0}, 3, v{t0}        ; 8g")
    e(f"  v_bfe_u32 v{t1}, v0, 2, 2            ; r'")
    e(f"  v_add_u32 v{t0}, v{t0}, v{t1}")
    e(f"  v_mul_u32_u24 v{t0}, 192, v{t0}")
    e(f"  v_and_b32 v{t1}, 3, v0")
    e(f"  v_lshlrev_b32 v{t1}, 4, v{t1}")
    e(f"  v_add_u32 v{vT}, v{t0}, v{t1}")
    e(f"  s_waitcnt vmcnt({3*D})")
    stamp(2)
    e(f"  s_barrier")
    for n in range(6):
        m, b = n >> 1, n & 1
        for s in range(3):
            for u in range(2):
                r = WT + (n*3+s)*4 + 2*u
                e(f"  ds_read_b64_tr_b16 v[{r}:{r+1}], v{vT} offset:{s*6144 + u*768 + m*64 + b*8}")
    for w in range(12):
        e(f"  v_lshlrev_b32 v{DW+2*w}, 16, v{B+w}")
        e(f"  v_and_b32 v{DW+2*w+1}, s{sMask}, v{B+w}")
    e(f"  s_waitcnt lgkmcnt(0)")
    e(f"  s_barrier")
    stamp(3)
    if stamps:
        e(f"  s_getreg_b32 s56, hwreg(HW_REG_XCC_ID)")
        e(f"  s_getreg_b32 s57, hwreg(HW_REG_HW_ID)")
        e(f"  v_writelane_b32 v11, s56, 4")
        e(f"  v_writelane_b32 v11, s57, 5")
    seq = []
    for k in range(D): seq.append(("L", k))
    N = []
    for i in range(T):
        idx = seq.index(("L", i))
        N.append(3*(len(seq)-1-idx))
        if i + D < T: seq.append(("L", i+D))
        seq.append(("S", i))
    assert max(N) <= 63
    runs = []
    for i, n in enumerate(N):
        if runs and runs[-1][1] == n: runs[-1][0] = i+1
        else: runs.append([i+1, n])
    e("L_loop:")
    e(f"  v_add_u32 v{vBR}, s{sSlot}, v{vBB}")
    for ri, (end, n) in enumerate(runs[:-1]):
        e(f"  s_cmp_lt_u32 s{sI}, {end}")
        e(f"  s_cbranch_scc1 L_w{ri}")
    e(f"  s_waitcnt vmcnt({runs[-1][1]})")
    e("L_body:")
    stamp(8, sI)
    for s in range(3):
        e(f"  ds_read_b128 v[{B+4*s}:{B+4*s+3}], v{vBR} offset:{s*64}")
    e(f"  s_mov_b32 m0, s{sSlot}")
    e(f"  s_add_u32 s{sSlot}, s{sSlot}, {TILE}")
    e(f"  s_cmp_eq_u32 s{sSlot}, s{sRingHi}")
    e(f"  s_cselect_b32 s{sSlot}, s{sRingLo}, s{sSlot}")
    e(f"  s_waitcnt lgkmcnt(0)")
    if T > D:
        e(f"  s_cmp_ge_u32 s{sI}, {T-D}")
        e(f"  s_cbranch_scc1 L_noload")
        for q, vd in enumerate((vD0, vD1, vD2)):
            e(f"  buffer_load_dwordx4 v{vd}, s[12:15], s{sLd} offen offset:{q*1024} {ldf} lds")
        e(f"  s_add_u32 s{sLd}, s{sLd}, {step}")
        e("L_noload:")
    def scale(s):
        ops = []
        for w in range(4):
            x = B+4*s+w
            d = DW + 2*(4*s+w)
            ta = TMP + 2*(w & 1)
            ops.append(f"  v_lshlrev_b32 v{ta}, 16, v{x}")
            ops.append(f"  v_and_b32 v{ta+1}, s{sMask}, v{x}")
            ops.append(f"  v_mul_f32 v{ta}, v{ta}, v{d}")
            ops.append(f"  v_mul_f32 v{ta+1}, v{ta+1}, v{d+1}")
            ops.append(f"  v_cvt_pk_bf16_f32 v{x}, v{ta}, v{ta+1}")
        return ops
    def mfma(s, n):
        a = WT + (n*3+s)*4
        c = "0" if s == 0 else f"v[{ACC+4*n}:{ACC+4*n+3}]"
        return f"  v_mfma_f32_16x16x32_bf16 v[{ACC+4*n}:{ACC+4*n+3}], v[{a}:{a+3}], v[{B+4*s}:{B+4*s+3}], {c}"
    for x in scale(0): e(x)
    for s in range(3):
        nxt = scale(s+1) if s < 2 else []
        pre = nxt[:2]; nxt = nxt[2:]
        if pre:
            for x in pre: e(x)
        else:
            e("  s_nop 1")
        per = -(-len(nxt)//6)
        for n in range(6):
            e(mfma(s, n))
            for x in nxt[n*per:(n+1)*per]: e(x)
    e("  s_nop 2")
    for m in range(3):
        for b in range(2):
            n = 2*m+b
            e(f"  v_cvt_pk_bf16_f32 v{O+4*m+2*b}, v{ACC+4*n}, v{ACC+4*n+1}")
            e(f"  v_cvt_pk_bf16_f32 v{O+4*m+2*b+1}, v{ACC+4*n+2}, v{ACC+4*n+3}")
        e(f"  ds_write_b128 v{vOW}, v[{O+4*m}:{O+4*m+3}] offset:{m*64}")
    e(f"  s_waitcnt lgkmcnt(0)")
    for q, vr in enumerate((vOR0, vOR1, vOR2)):
        e(f"  ds_read_b128 v[{R+4*q}:{R+4*q+3}], v{vr}")
    for q in range(3):
        e(f"  s_waitcnt lgkmcnt({2-q})")
        e(f"  buffer_store_dwordx4 v[{R+4*q}:{R+4*q+3}], v{vD0}, s[16:19], s{sSt} offen offset:{q*1024} {stf}")
    e(f"  s_add_u32 s{sSt}, s{sSt}, {step}")
    stamp(32, sI)
    e(f"  s_add_u32 s{sI}, s{sI}, 1")
    e(f"  s_cmp_lt_u32 s{sI}, {T}")
    e(f"  s_cbranch_scc1 L_loop")
    if stamps:
        stamp(6)
        e(f"  s_waitcnt vmcnt(0)")
        stamp(7)
        e(f"  s_mul_i32 s{sT}, s2, {W}")
        e(f"  s_add_u32 s{sT}, s{sT}, s{sWave}")
        e(f"  s_lshl_b32 s{sT}, s{sT}, 8")
        e(f"  v_lshlrev_b32 v{TMP}, 2, v0")
        e(f"  v_add_u32 v{TMP}, s{sT}, v{TMP}")
        e(f"  global_store_dword v{TMP}, v11, s[44:45]")
    e("L_end:")
    e("  s_endpgm")
    for ri, (end, n) in enumerate(runs[:-1]):
        e(f"L_w{ri}:")
        e(f"  s_waitcnt vmcnt({n})")
        e(f"  s_branch L_body")
    e('.section .rodata,"a"')
    e(".p2align 6")
    e(f".amdhsa_kernel {NAME}")
    e(f"  .amdhsa_next_free_vgpr {NV}")
    e(f"  .amdhsa_next_free_sgpr {72 if stamps else 40}")
    e(f"  .amdhsa_accum_offset {(NV+3)//4*4}")
    e("  .amdhsa_group_segment_fixed_size 0")
    e("  .amdhsa_kernarg_size 48")
    e("  .amdhsa_user_sgpr_count 2")
    e("  .amdhsa_user_sgpr_kernarg_segment_ptr 1")
    e("  .amdhsa_system_sgpr_workgroup_id_x 1")
    e("  .amdhsa_float_denorm_mode_32 3")
    e(".end_amdhsa_kernel")
    return "\n".join(o) + "\n"

if __name__ == "__main__":
    ap = argparse.ArgumentParser()
    ap.add_argument("-o", required=True)
    ap.add_argument("--W", type=int, default=8)
    ap.add_argument("--NWG", type=int, default=256)
    ap.add_argument("--D", type=int, default=5)
    ap.add_argument("--map", default="sweep")
    ap.add_argument("--ldf", default="")
    ap.add_argument("--stf", default="")
    ap.add_argument("--ldsmin", type=int, default=0)
    ap.add_argument("--stamps", action="store_true")
    a = ap.parse_args()
    open(a.o, "w").write(gen(a.W, a.NWG, a.D, a.map, a.ldf, a.stf, a.ldsmin, a.stamps))
```

```python
import sys, argparse
from gen1 import HEADER, NAME, TOTAL, TILE

def gen(G=1, D=3, NB=1, rounds=1, thr=140, pf="", ldf="nt", stf="sc0 sc1", force=None, stamps=False, lds_min=90000):
    W = 8; NWG = 256; T = 8
    SPAN = 16*TILE
    OUTA = W*TILE
    VOTE = OUTA + W*D*TILE
    lds = max(VOTE + 64, lds_min)
    assert lds <= 163840 and NB <= D
    o = []
    e = o.append
    e(HEADER + f"; @launch grid=({NWG},1,1) block=({W*64},1,1) lds={lds}")
    e('.amdgcn_target "amdgcn-amd-amdhsa--gfx950"')
    e(".text")
    e(f".globl {NAME}")
    e(".p2align 8")
    e(f".type {NAME},@function")
    e(f"{NAME}:")
    vD0, vD1, vD2, vBR, vBB, vOW, vOR0, vOR1, vOR2, vT = 1,2,3,4,5,6,7,8,9,10
    B = 12; ACC = 24; O = 48; R = 60; DW = 72; TMP = 96; WT = 100; vAT = 172; vVA = 173
    NV = 174
    sWave, sLd, sSt, sI, sSlot, sOff, sMask, sRingLo, sRingHi, sT = 28,29,30,31,32,33,34,35,36,37
    sOffA, sOffB, sClsL, sClsS, sM, sSh, sU = 38,39,40,41,42,43,46
    sDbg = 44
    def stamp(j, dyn=None):
        if not stamps: return
        e(f"  s_memrealtime s[48:49]")
        if dyn is not None:
            e(f"  s_add_u32 s50, s{dyn}, {j}")
            e(f"  s_mov_b32 s51, m0")
            e(f"  s_mov_b32 m0, s50")
        e(f"  s_waitcnt lgkmcnt(0)")
        if dyn is not None:
            e(f"  v_writelane_b32 v11, s48, m0")
            e(f"  s_mov_b32 m0, s51")
        else:
            e(f"  v_writelane_b32 v11, s48, {j}")
    def tileoff(sSpan, sCls):
        e(f"  s_add_u32 s{sOff}, s{sSpan}, {SPAN//2}")
        e(f"  s_lshr_b32 s{sOff}, s{sOff}, 21")
        e(f"  s_xor_b32 s{sOff}, s{sOff}, s{sCls}")
        e(f"  s_bitcmp1_b32 s{sOff}, 0")
        e(f"  s_cselect_b32 s{sOff}, s{sOffB}, s{sOffA}")
        e(f"  s_add_u32 s{sOff}, s{sOff}, s{sSpan}")
    def loads():
        for q, vd in enumerate((vD0, vD1, vD2)):
            e(f"  buffer_load_dwordx4 v{vd}, s[12:15], s{sOff} offen offset:{q*1024} {ldf} lds")
    e(f"  s_cmp_ge_u32 s2, {NWG}")
    e(f"  s_cbranch_scc1 L_end")
    if stamps: e("  v_mov_b32 v11, 0")
    stamp(0)
    e(f"  s_load_dwordx8 s[4:11], s[0:1], 0")
    e(f"  s_load_dwordx2 s[{sDbg}:{sDbg+1}], s[0:1], 32")
    if stamps: e(f"  s_load_dwordx2 s[52:53], s[0:1], 40")
    e(f"  v_lshrrev_b32 v{vT}, 6, v0")
    e(f"  v_and_b32 v0, 63, v0                 ; lane")
    e(f"  v_readfirstlane_b32 s{sWave}, v{vT}")
    e(f"  v_lshlrev_b32 v{vD0}, 4, v0          ; l*16")
    e(f"  v_xor_b32 v{vD2}, 32, v{vD0}         ; (l^2)*16")
    e(f"  v_and_b32 v{vT}, 32, v0")
    e(f"  v_xor_b32 v{vD1}, v{vT}, v{vD0}      ; l>=32 ? (l^2)*16 : l*16")
    e(f"  v_and_b32 v{vT}, 48, v0              ; g*16")
    e(f"  s_lshr_b32 s{sT}, s2, 3")
    e(f"  s_lshl_b32 s{sT}, s{sT}, 2")
    e(f"  s_and_b32 s{sU}, s2, 3")
    e(f"  s_or_b32 s{sU}, s{sU}, s{sT}")
    e(f"  s_bfe_u32 s{sM}, s2, 0x10002")
    STEP = G*SPAN
    if G == 1:
        e(f"  s_mul_i32 s{sLd}, s{sU}, {SPAN*T}")
    else:
        e(f"  s_and_b32 s{sLd}, s{sU}, {G-1}")
        e(f"  s_andn2_b32 s{sT}, s{sU}, {G-1}")
        e(f"  s_lshl_b32 s{sT}, s{sT}, 3            ; group*G*T")
        e(f"  s_add_u32 s{sLd}, s{sLd}, s{sT}")
        e(f"  s_mul_i32 s{sLd}, s{sLd}, {SPAN}")
    e(f"  s_mov_b32 s{sSt}, s{sLd}")
    e(f"  s_lshl_b32 s{sT}, s{sWave}, 2")
    e(f"  s_lshr_b32 s{sT}, 0xcb756210, s{sT}")
    e(f"  s_and_b32 s{sT}, s{sT}, 15")
    e(f"  s_mul_i32 s{sOffA}, s{sT}, {TILE}")
    e(f"  s_xor_b32 s{sT}, s{sT}, 8")
    e(f"  s_mul_i32 s{sOffB}, s{sT}, {TILE}")
    e(f"  s_lshr_b32 s{sClsL}, s{sWave}, 2")
    e(f"  s_xor_b32 s{sClsL}, s{sClsL}, s{sM}")
    e(f"  s_mov_b32 s{sClsS}, s{sClsL}")
    tileoff(sLd, sClsL)
    e(f"  s_mul_i32 s{sRingLo}, s{sWave}, {D*TILE}")
    e(f"  s_add_u32 s{sRingLo}, s{sRingLo}, {OUTA}")
    e(f"  s_mov_b32 m0, s{sRingLo}")
    e(f"  s_mov_b32 s14, {TOTAL}")
    e(f"  s_mov_b32 s15, 0x20000")
    e(f"  s_mov_b32 s22, 18432")
    e(f"  s_mov_b32 s23, 0x20000")
    e(f"  s_mov_b32 s26, 192")
    e(f"  s_mov_b32 s27, 0x20000")
    e(f"  s_mul_i32 s{sT}, s{sWave}, {TILE}")
    e(f"  s_and_b32 s{sSh}, s{sU}, 1")
    e(f"  s_lshl_b32 s{sSh}, s{sSh}, 1")
    e(f"  s_or_b32 s{sSh}, s{sSh}, s{sM}")
    e(f"  s_lshl_b32 s{sSh}, s{sSh}, 3")
    e(f"  s_lshr_b32 s{sU}, s{sU}, 1")
    e(f"  s_lshl_b32 s{sU}, s{sU}, 2")
    e(f"  v_mov_b32 v{vVA}, {VOTE}")
    e(f"  s_cmp_lg_u32 s{sWave}, 0")
    e(f"  s_cbranch_scc1 L_notw0")
    e(f"  s_add_u32 s60, s{sLd}, {(T-1)*STEP}")
    e(f"  s_lshl_b32 s61, s{sM}, 10")
    e(f"  s_add_u32 s62, s60, s61")
    e(f"  v_mov_b32 v{TMP}, s62")
    e(f"  v_add_u32 v{TMP+1}, 8192, v{TMP}")
    e(f"  s_mov_b64 exec, 1")
    e(f"  s_waitcnt lgkmcnt(0)")
    e(f"  global_load_dword v{TMP+2}, v{TMP}, s[4:5] {pf}")
    e(f"  global_load_dword v{TMP+3}, v{TMP+1}, s[4:5] {pf}")
    e(f"  s_memtime s[70:71]")
    e(f"  s_barrier")
    e(f"  s_waitcnt vmcnt(1)")
    e(f"  s_memtime s[64:65]")
    e(f"  s_waitcnt vmcnt(0)")
    e(f"  s_memtime s[66:67]")
    if rounds == 2:
        e(f"  global_load_dword v{TMP+2}, v{TMP+1}, s[4:5] offset:128 {pf}")
        e(f"  global_load_dword v{TMP+3}, v{TMP}, s[4:5] offset:128 {pf}")
        e(f"  s_waitcnt vmcnt(1)")
        e(f"  s_memtime s[72:73]")
        e(f"  s_waitcnt vmcnt(0)")
        e(f"  s_memtime s[74:75]")
    e(f"  s_mov_b64 exec, -1")
    e(f"  s_waitcnt lgkmcnt(0)")
    e(f"  s_sub_u32 s61, s66, s64")
    if stamps:
        e(f"  v_writelane_b32 v11, s61, 56")
        e(f"  s_sub_u32 s70, s64, s70")
        e(f"  v_writelane_b32 v11, s70, 60")
    if rounds == 2:
        e(f"  s_sub_u32 s62, s74, s72               ; gap 2")
        if stamps:
            e(f"  v_writelane_b32 v11, s62, 61")
            e(f"  s_sub_u32 s70, s72, s66")
            e(f"  v_writelane_b32 v11, s70, 62")
    else:
        e(f"  s_mov_b32 s62, {thr}")
    if stamps:
        e(f"  s_lshr_b32 s70, s60, 21")
        e(f"  v_writelane_b32 v11, s70, 63")
    if force is None:
        e(f"  s_cmp_lt_u32 s61, s62")
        e(f"  s_cselect_b32 s61, 1, 0")
        e(f"  s_lshr_b32 s60, s60, 21")
        e(f"  s_xor_b32 s61, s61, s60")
        e(f"  s_and_b32 s61, s61, 1")
    else:
        e(f"  s_getreg_b32 s61, hwreg(HW_REG_XCC_ID)")
        e(f"  s_bfe_u32 s61, s61, 0x10002")
        e(f"  s_xor_b32 s61, s61, {force}")
    e(f"  v_mov_b32 v{TMP}, s61")
    e(f"  ds_write_b32 v{vVA}, v{TMP}")
    e(f"  s_or_b32 s61, s61, 2")
    e(f"  s_lshl_b32 s61, s61, s{sSh}")
    e(f"  v_mov_b32 v{vAT}, s61")
    e(f"  v_mov_b32 v{TMP+1}, s{sU}")
    e(f"  s_waitcnt lgkmcnt(0)")
    e(f"  s_barrier")
    e(f"  s_mov_b64 exec, 1")
    e(f"  global_atomic_or v{vAT}, v{TMP+1}, v{vAT}, s[{sDbg}:{sDbg+1}] sc0")
    e(f"  s_mov_b64 exec, -1")
    e(f"  s_branch L_common")
    e("L_notw0:")
    e(f"  s_waitcnt lgkmcnt(0)")
    e(f"  s_barrier")
    e("L_common:")
    e(f"  s_mov_b32 s12, s4")
    e(f"  s_mov_b32 s13, s5")
    loads()
    e(f"  s_mov_b32 s24, s6")
    e(f"  s_mov_b32 s25, s7")
    for s in range(3):
        e(f"  buffer_load_dwordx4 v[{B+4*s}:{B+4*s+3}], v{vT}, s[24:27], 0 offen offset:{s*64}")
    e(f"  s_mov_b32 s20, s8")
    e(f"  s_mov_b32 s21, s9")
    e(f"  s_sub_u32 s60, s{sT}, {TILE}")
    e(f"  s_cmp_ge_u32 s60, 18432")
    e(f"  s_cbranch_scc1 L_nopw")
    e(f"  s_mov_b32 m0, s60")
    e(f"  s_nop 0")
    for k in range(3):
        e(f"  buffer_load_dwordx4 v{vD0}, s[20:23], s60 offen offset:{k*1024} lds")
    e("L_nopw:")
    e(f"  s_mov_b32 s{sSlot}, s{sRingLo}")
    for k in range(1, NB):
        e(f"  s_add_u32 s{sLd}, s{sLd}, {STEP}")
        e(f"  s_add_u32 s{sSlot}, s{sSlot}, {TILE}")
        e(f"  s_mov_b32 m0, s{sSlot}")
        tileoff(sLd, sClsL)
        loads()
    stamp(1)
    e(f"  s_add_u32 s{sRingHi}, s{sRingLo}, {D*TILE}")
    e(f"  s_mov_b32 s16, s10")
    e(f"  s_mov_b32 s17, s11")
    e(f"  s_mov_b32 s18, {TOTAL}")
    e(f"  s_mov_b32 s19, 0x20000")
    e(f"  s_mov_b32 s{sMask}, 0xffff0000")
    e(f"  s_mov_b32 s{sI}, 0")
    e(f"  s_cmp_eq_u32 s{sWave}, 0")
    e(f"  s_cbranch_scc1 L_skipb0")
    e(f"  s_barrier")
    e("L_skipb0:")
    e(f"  ds_read_b32 v{TMP}, v{vVA}")
    e(f"  s_waitcnt lgkmcnt(0)")
    e(f"  v_readfirstlane_b32 s{sClsL}, v{TMP}")
    if stamps:
        e(f"  s_nop 3")
        e(f"  v_writelane_b32 v11, s{sClsL}, 57")
    for k in range(NB, D):
        e(f"  s_add_u32 s{sLd}, s{sLd}, {STEP}")
        e(f"  s_add_u32 s{sSlot}, s{sSlot}, {TILE}")
        e(f"  s_mov_b32 m0, s{sSlot}")
        tileoff(sLd, sClsL)
        loads()
    stamp(59)
    e(f"  s_mov_b32 s{sSlot}, s{sRingLo}")
    t0, t1, t2 = TMP, TMP+1, TMP+2
    e(f"  v_and_b32 v{t0}, 15, v0              ; j")
    e(f"  v_mul_u32_u24 v{t1}, 192, v{t0}      ; j*192")
    e(f"  v_and_b32 v{t2}, 8, v0")
    e(f"  v_lshlrev_b32 v{t2}, 2, v{t2}        ; f(j)*16 = (j&8)<<2")
    e(f"  v_xor_b32 v{t2}, v{t2}, v{vT}        ; (g^f)*16")
    e(f"  v_add_u32 v{vBB}, v{t1}, v{t2}")
    e(f"  v_and_b32 v{t2}, 6, v0")
    e(f"  v_lshlrev_b32 v{t2}, 3, v{t2}        ; fo(j)*16 = ((j>>1)&3)<<4")
    e(f"  v_xor_b32 v{t2}, v{t2}, v{vT}")
    e(f"  v_add_u32 v{vOW}, v{t1}, v{t2}")
    e(f"  v_add_u32 v{vOW}, s{sT}, v{vOW}")
    for q, vr in enumerate((vOR0, vOR1, vOR2)):
        e(f"  v_add_u32 v{t0}, {q*64}, v0          ; P")
        e(f"  v_mul_u32_u24 v{t1}, 171, v{t0}")
        e(f"  v_lshrrev_b32 v{t1}, 12, v{t1}       ; (P/12)>>1")
        e(f"  v_and_b32 v{t1}, 3, v{t1}")
        e(f"  v_xor_b32 v{t0}, v{t0}, v{t1}")
        e(f"  v_lshlrev_b32 v{t0}, 4, v{t0}")
        e(f"  v_add_u32 v{vr}, s{sT}, v{t0}")
    e(f"  v_lshrrev_b32 v{t0}, 4, v0           ; g")
    e(f"  v_lshlrev_b32 v{t0}, 3, v{t0}        ; 8g")
    e(f"  v_bfe_u32 v{t1}, v0, 2, 2            ; r'")
    e(f"  v_add_u32 v{t0}, v{t0}, v{t1}")
    e(f"  v_mul_u32_u24 v{t0}, 192, v{t0}")
    e(f"  v_and_b32 v{t1}, 3, v0")
    e(f"  v_lshlrev_b32 v{t1}, 4, v{t1}")
    e(f"  v_add_u32 v{vT}, v{t0}, v{t1}")
    e(f"  s_cmp_eq_u32 s{sWave}, 0")
    e(f"  s_cbranch_scc1 L_skipw")
    e(f"  s_waitcnt vmcnt({3*(D-1)})")
    e("L_skipw:")
    stamp(2)
    e(f"  s_barrier                             ; barrier 1")
    for n in range(6):
        m, b = n >> 1, n & 1
        for s in range(3):
            for u in range(2):
                r = WT + (n*3+s)*4 + 2*u
                e(f"  ds_read_b64_tr_b16 v[{r}:{r+1}], v{vT} offset:{s*6144 + u*768 + m*64 + b*8}")
    e(f"  s_waitcnt vmcnt({3*(D-1)})")
    for w in range(12):
        e(f"  v_lshlrev_b32 v{DW+2*w}, 16, v{B+w}")
        e(f"  v_and_b32 v{DW+2*w+1}, s{sMask}, v{B+w}")
    e(f"  s_cmp_lg_u32 s{sWave}, 0")
    e(f"  s_cbranch_scc1 L_nopub")
    e(f"  v_readfirstlane_b32 s{sT}, v{vAT}")
    e(f"  s_xor_b32 s{sSh}, s{sSh}, 8")
    e(f"  s_lshr_b32 s{sT}, s{sT}, s{sSh}")
    e(f"  s_xor_b32 s{sU}, s{sT}, 1")
    e(f"  s_and_b32 s{sU}, s{sU}, 1")
    e(f"  s_bitcmp1_b32 s{sT}, 1")
    e(f"  s_cselect_b32 s{sT}, s{sU}, s{sClsL}")
    e(f"  v_mov_b32 v{TMP}, s{sT}")
    e(f"  ds_write_b32 v{vVA}, v{TMP} offset:4")
    e("L_nopub:")
    e(f"  s_waitcnt lgkmcnt(0)")
    e(f"  s_barrier                             ; barrier 2")
    e(f"  ds_read_b32 v{TMP}, v{vVA} offset:4")
    e(f"  s_waitcnt lgkmcnt(0)")
    e(f"  v_readfirstlane_b32 s{sT}, v{TMP}")
    e(f"  s_cmp_lg_u32 s{sT}, s{sClsL}")
    e(f"  s_cbranch_scc1 L_fix")
    e("L_fixed:")
    stamp(3)
    if stamps:
        e(f"  s_getreg_b32 s56, hwreg(HW_REG_XCC_ID)")
        e(f"  s_getreg_b32 s57, hwreg(HW_REG_HW_ID)")
        e(f"  v_writelane_b32 v11, s56, 4")
        e(f"  v_writelane_b32 v11, s57, 5")
    seq = [("L", k) for k in range(D)]
    N = []
    for i in range(T):
        idx = seq.index(("L", i))
        N.append(3*(len(seq)-1-idx))
        if i + D < T: seq.append(("L", i+D))
        seq.append(("S", i))
    assert max(N) <= 63
    runs = []
    for i, n in enumerate(N):
        if i > 0 and runs[-1][1] == n: runs[-1][0] = i+1
        else: runs.append([i+1, n])
    e("L_loop:")
    e(f"  v_add_u32 v{vBR}, s{sSlot}, v{vBB}")
    for ri, (end, n) in enumerate(runs[:-1]):
        e(f"  s_cmp_lt_u32 s{sI}, {end}")
        e(f"  s_cbranch_scc1 L_w{ri}")
    e(f"  s_waitcnt vmcnt({runs[-1][1]})")
    e("L_body:")
    stamp(8, sI)
    for s in range(3):
        e(f"  ds_read_b128 v[{B+4*s}:{B+4*s+3}], v{vBR} offset:{s*64}")
    e(f"  s_mov_b32 m0, s{sSlot}")
    e(f"  s_add_u32 s{sSlot}, s{sSlot}, {TILE}")
    e(f"  s_cmp_eq_u32 s{sSlot}, s{sRingHi}")
    e(f"  s_cselect_b32 s{sSlot}, s{sRingLo}, s{sSlot}")
    e(f"  s_add_u32 s{sLd}, s{sLd}, {STEP}")
    tileoff(sLd, sClsL)
    e(f"  s_cmp_ge_u32 s{sI}, {T-D}")
    e(f"  s_waitcnt lgkmcnt(0)")
    e(f"  s_cbranch_scc1 L_noload")
    loads()
    e("L_noload:")
    def scale(s):
        ops = []
        for w in range(4):
            x = B+4*s+w
            d = DW + 2*(4*s+w)
            ta = TMP + 2*(w & 1)
            ops.append(f"  v_lshlrev_b32 v{ta}, 16, v{x}")
            ops.append(f"  v_and_b32 v{ta+1}, s{sMask}, v{x}")
            ops.append(f"  v_mul_f32 v{ta}, v{ta}, v{d}")
            ops.append(f"  v_mul_f32 v{ta+1}, v{ta+1}, v{d+1}")
            ops.append(f"  v_cvt_pk_bf16_f32 v{x}, v{ta}, v{ta+1}")
        return ops
    def mfma(s, n):
        a = WT + (n*3+s)*4
        c = "0" if s == 0 else f"v[{ACC+4*n}:{ACC+4*n+3}]"
        return f"  v_mfma_f32_16x16x32_bf16 v[{ACC+4*n}:{ACC+4*n+3}], v[{a}:{a+3}], v[{B+4*s}:{B+4*s+3}], {c}"
    for x in scale(0): e(x)
    for s in range(3):
        nxt = scale(s+1) if s < 2 else []
        pre = nxt[:2]; nxt = nxt[2:]
        if pre:
            for x in pre: e(x)
        else:
            e("  s_nop 1")
        per = -(-len(nxt)//6)
        for n in range(6):
            e(mfma(s, n))
            for x in nxt[n*per:(n+1)*per]: e(x)
    tileoff(sSt, sClsS)
    for m in range(3):
        for b in range(2):
            n = 2*m+b
            e(f"  v_cvt_pk_bf16_f32 v{O+4*m+2*b}, v{ACC+4*n}, v{ACC+4*n+1}")
            e(f"  v_cvt_pk_bf16_f32 v{O+4*m+2*b+1}, v{ACC+4*n+2}, v{ACC+4*n+3}")
        e(f"  ds_write_b128 v{vOW}, v[{O+4*m}:{O+4*m+3}] offset:{m*64}")
    e(f"  s_waitcnt lgkmcnt(0)")
    for q, vr in enumerate((vOR0, vOR1, vOR2)):
        e(f"  ds_read_b128 v[{R+4*q}:{R+4*q+3}], v{vr}")
    for q in range(3):
        e(f"  s_waitcnt lgkmcnt({2-q})")
        e(f"  buffer_store_dwordx4 v[{R+4*q}:{R+4*q+3}], v{vD0}, s[16:19], s{sOff} offen offset:{q*1024} {stf}")
    e(f"  s_add_u32 s{sSt}, s{sSt}, {STEP}")
    stamp(32, sI)
    e(f"  s_add_u32 s{sI}, s{sI}, 1")
    if NB > 1:
        e(f"  s_cmp_ge_u32 s{sI}, {NB}")
        e(f"  s_cselect_b32 s{sClsS}, s{sClsL}, s{sClsS}")
    else:
        e(f"  s_mov_b32 s{sClsS}, s{sClsL}")
    e(f"  s_cmp_lt_u32 s{sI}, {T}")
    e(f"  s_cbranch_scc1 L_loop")
    if stamps:
        stamp(6)
        e(f"  s_waitcnt vmcnt(0)")
        stamp(7)
        e(f"  v_writelane_b32 v11, s{sClsS}, 58")
        e(f"  s_mul_i32 s{sT}, s2, {W}")
        e(f"  s_add_u32 s{sT}, s{sT}, s{sWave}")
        e(f"  s_lshl_b32 s{sT}, s{sT}, 8")
        e(f"  v_lshlrev_b32 v{TMP}, 2, v0")
        e(f"  v_add_u32 v{TMP}, s{sT}, v{TMP}")
        e(f"  global_store_dword v{TMP}, v11, s[52:53]")
    e("L_end:")
    e("  s_endpgm")
    for ri, (end, n) in enumerate(runs[:-1]):
        e(f"L_w{ri}:")
        e(f"  s_waitcnt vmcnt({n})")
        e(f"  s_branch L_body")
    e("L_fix:")
    e(f"  s_waitcnt vmcnt(0)")
    e(f"  s_mov_b32 s{sClsL}, s{sT}")
    e(f"  s_add_u32 s{sT}, s{sRingLo}, {NB*TILE}")
    e(f"  s_add_u32 s{sU}, s{sSt}, {NB*STEP}")
    for k in range(NB, D):
        e(f"  s_mov_b32 m0, s{sT}")
        tileoff(sU, sClsL)
        loads()
        e(f"  s_add_u32 s{sT}, s{sT}, {TILE}")
        e(f"  s_add_u32 s{sU}, s{sU}, {STEP}")
    e(f"  s_branch L_fixed")
    e('.section .rodata,"a"')
    e(".p2align 6")
    e(f".amdhsa_kernel {NAME}")
    e(f"  .amdhsa_next_free_vgpr {NV}")
    e(f"  .amdhsa_next_free_sgpr 80")
    e(f"  .amdhsa_accum_offset {(NV+3)//4*4}")
    e("  .amdhsa_group_segment_fixed_size 0")
    e("  .amdhsa_kernarg_size 48")
    e("  .amdhsa_user_sgpr_count 2")
    e("  .amdhsa_user_sgpr_kernarg_segment_ptr 1")
    e("  .amdhsa_system_sgpr_workgroup_id_x 1")
    e("  .amdhsa_float_denorm_mode_32 3")
    e(".end_amdhsa_kernel")
    return "\n".join(o) + "\n"

if __name__ == "__main__":
    ap = argparse.ArgumentParser()
    ap.add_argument("-o", required=True)
    ap.add_argument("--G", type=int, default=1)
    ap.add_argument("--D", type=int, default=3)
    ap.add_argument("--NB", type=int, default=1)
    ap.add_argument("--rounds", type=int, default=1)
    ap.add_argument("--thr", type=int, default=140)
    ap.add_argument("--pf", default="")
    ap.add_argument("--ldf", default="nt")
    ap.add_argument("--stf", default="sc0 sc1")
    ap.add_argument("--force", type=int, default=None)
    ap.add_argument("--stamps", action="store_true")
    a = ap.parse_args()
    open(a.o, "w").write(gen(a.G, a.D, a.NB, a.rounds, a.thr, a.pf, a.ldf, a.stf, a.force, a.stamps))
```

```python
import sys, argparse
from gen1 import HEADER, NAME, TOTAL, TILE

def gen(G=16, D=2, late=True, dyn=True, thr=16, ldf="nt", stf="sc0 sc1", force=None, stamps=False, lds_min=90000, noloc=False):
    W = 8; NWG = 256; T = 8
    SPAN = 16*TILE
    STEP = G*SPAN
    WTA = 0
    DWA = 18432
    OUTA = 20480
    RING = OUTA + W*TILE
    CTL = RING + W*D*TILE
    lds = max(CTL + 64, lds_min)
    assert lds <= 163840
    o = []
    e = o.append
    e(HEADER + f"; @launch grid=({NWG},1,1) block=({W*64},1,1) lds={lds}")
    e('.amdgcn_target "amdgcn-amd-amdhsa--gfx950"')
    e(".text")
    e(f".globl {NAME}")
    e(".p2align 8")
    e(f".type {NAME},@function")
    e(f"{NAME}:")
    vD0, vD1, vD2, vBR, vBB, vOW, vOR0, vOR1, vOR2, vT = 1,2,3,4,5,6,7,8,9,10
    B = 12; ACC = 24; O = 48; R = 60; DW = 72; TMP = 96; WT = 100; vCTL = 172; vONE = 173; vN = 174
    NV = 175
    sWave, sBase, sI, sSlot, sMask, sRingLo, sRingHi, sT, sU, sCls, sM, sSh, sN, sSpan = 28,29,30,31,32,33,34,35,36,37,38,39,40,41
    sP = 42; sBC = 43; sND = 46
    sDbg = 44
    sQ = 64
    def stamp(j, dynr=None):
        if not stamps: return
        e(f"  s_memrealtime s[48:49]")
        if dynr is not None:
            e(f"  s_add_u32 s50, s{dynr}, {j}")
            e(f"  s_mov_b32 s51, m0")
            e(f"  s_mov_b32 m0, s50")
        e(f"  s_waitcnt lgkmcnt(0)")
        if dynr is not None:
            e(f"  v_writelane_b32 v11, s48, m0")
            e(f"  s_mov_b32 m0, s51")
        else:
            e(f"  v_writelane_b32 v11, s48, {j}")
    def tileoff(dst, sn, scls):
        e(f"  s_lshr_b32 s{sSpan}, s{sn}, 3")
        e(f"  s_mul_i32 s{sSpan}, s{sSpan}, {STEP}")
        e(f"  s_add_u32 s{sSpan}, s{sSpan}, s{sBase}")
        e(f"  s_lshl_b32 s{sT}, s{sn}, 2")
        e(f"  s_lshr_b32 s{sT}, 0xcb756210, s{sT}")
        e(f"  s_add_u32 s{sU}, s{sSpan}, {SPAN//2}")
        e(f"  s_lshr_b32 s{sU}, s{sU}, 21")
        e(f"  s_xor_b32 s{sU}, s{sU}, s{scls}")
        e(f"  s_lshl_b32 s{sU}, s{sU}, 3")
        e(f"  s_xor_b32 s{sT}, s{sT}, s{sU}")
        e(f"  s_and_b32 s{sT}, s{sT}, 15")
        e(f"  s_mul_i32 s{sT}, s{sT}, {TILE}")
        e(f"  s_add_u32 s{dst}, s{sT}, s{sSpan}")
    def loads(so):
        for q, vd in enumerate((vD0, vD1, vD2)):
            e(f"  buffer_load_dwordx4 v{vd}, s[12:15], s{so} offen offset:{q*1024} {ldf} lds")
    e(f"  s_cmp_ge_u32 s2, {NWG}")
    e(f"  s_cbranch_scc1 L_end")
    if stamps: e("  v_mov_b32 v11, 0")
    stamp(0)
    e(f"  s_load_dwordx8 s[4:11], s[0:1], 0")
    e(f"  s_load_dwordx2 s[{sDbg}:{sDbg+1}], s[0:1], 32")
    if stamps: e(f"  s_load_dwordx2 s[52:53], s[0:1], 40")
    e(f"  v_lshrrev_b32 v{vT}, 6, v0")
    e(f"  v_and_b32 v0, 63, v0                 ; lane")
    e(f"  v_readfirstlane_b32 s{sWave}, v{vT}")
    e(f"  v_lshlrev_b32 v{vD0}, 4, v0          ; l*16")
    e(f"  v_xor_b32 v{vD2}, 32, v{vD0}         ; (l^2)*16")
    e(f"  v_and_b32 v{vT}, 32, v0")
    e(f"  v_xor_b32 v{vD1}, v{vT}, v{vD0}      ; l>=32 ? (l^2)*16 : l*16")
    e(f"  s_lshr_b32 s{sT}, s2, 3")
    e(f"  s_lshl_b32 s{sT}, s{sT}, 2")
    e(f"  s_and_b32 s{sP}, s2, 3")
    e(f"  s_or_b32 s{sP}, s{sP}, s{sT}")
    e(f"  s_bfe_u32 s{sM}, s2, 0x10002")
    e(f"  s_and_b32 s{sBase}, s{sP}, {G-1}")
    e(f"  s_andn2_b32 s{sT}, s{sP}, {G-1}")
    e(f"  s_lshl_b32 s{sT}, s{sT}, 3            ; group*G*T")
    e(f"  s_add_u32 s{sBase}, s{sBase}, s{sT}")
    e(f"  s_mul_i32 s{sBase}, s{sBase}, {SPAN}")
    e(f"  s_lshr_b32 s{sCls}, s{sWave}, 2")
    e(f"  s_xor_b32 s{sCls}, s{sCls}, s{sM}")
    tileoff(sQ, sWave, sCls)
    for k in range(1, D):
        e(f"  s_add_u32 s{sQ+k}, s{sQ+k-1}, {STEP}")
    e(f"  s_mul_i32 s{sRingLo}, s{sWave}, {D*TILE}")
    e(f"  s_add_u32 s{sRingLo}, s{sRingLo}, {RING}")
    e(f"  s_mov_b32 s14, {TOTAL}")
    e(f"  s_mov_b32 s15, 0x20000")
    e(f"  v_mov_b32 v{vCTL}, {CTL}")
    e(f"  s_cmp_lg_u32 s{sWave}, 0")
    e(f"  s_cbranch_scc1 L_notw0")
    e(f"  v_mov_b32 v{TMP}, {8*D}")
    e(f"  v_mov_b32 v{TMP+1}, 2")
    e(f"  ds_write_b64 v{vCTL}, v[{TMP}:{TMP+1}]")
    e(f"  s_add_u32 s60, s{sBase}, {(T-1)*STEP}")
    e(f"  s_lshl_b32 s61, s{sM}, 10")
    e(f"  s_add_u32 s60, s60, s61")
    e(f"  s_lshl_b32 s61, s{sP}, 13")
    e(f"  s_and_b32 s61, s61, 8192")
    e(f"  s_add_u32 s60, s60, s61")
    e(f"  v_mov_b32 v{TMP+2}, s60")
    e(f"  v_xor_b32 v{TMP+3}, 8192, v{TMP+2}")
    e(f"  s_and_b32 s{sSh}, s{sP}, 1")
    e(f"  s_lshl_b32 s{sSh}, s{sSh}, 1")
    e(f"  s_or_b32 s{sSh}, s{sSh}, s{sM}")
    e(f"  s_lshl_b32 s{sSh}, s{sSh}, 3")
    e(f"  s_lshr_b32 s62, s{sP}, 1")
    e(f"  s_lshl_b32 s62, s62, 2")
    e(f"  s_mov_b64 exec, 1")
    e(f"  s_branch L_probe")
    e(".p2align 6")
    e("L_probe:")
    e(f"  s_waitcnt lgkmcnt(0)")
    e(f"  s_barrier")
    e(f"  global_load_dword v{TMP}, v{TMP+2}, s[4:5]")
    e(f"  global_load_dword v{TMP+1}, v{TMP+3}, s[4:5]")
    e(f"  s_waitcnt vmcnt(1)")
    e(f"  s_memtime s[54:55]")
    e(f"  s_waitcnt vmcnt(0)")
    e(f"  s_memtime s[56:57]")
    e(f"  s_mov_b64 exec, -1")
    e(f"  s_lshr_b32 s61, s60, 8")
    e(f"  s_xor_b32 s60, s60, s61")
    e(f"  s_waitcnt lgkmcnt(0)")
    e(f"  s_sub_u32 s61, s56, s54")
    if stamps:
        e(f"  v_writelane_b32 v11, s61, 56")
        e(f"  s_lshr_b32 s63, s60, 13")
        e(f"  v_writelane_b32 v11, s63, 63")
    if force is None:
        e(f"  s_cmp_lt_u32 s61, {thr}")
        e(f"  s_cselect_b32 s61, 8192, 0")
        e(f"  s_xor_b32 s61, s61, s60")
        e(f"  s_bfe_u32 s61, s61, 0x1000d")
    else:
        e(f"  s_getreg_b32 s61, hwreg(HW_REG_XCC_ID)")
        e(f"  s_bfe_u32 s61, s61, 0x10002")
        e(f"  s_xor_b32 s61, s61, {force}")
    if stamps: e(f"  v_writelane_b32 v11, s61, 57")
    e(f"  s_or_b32 s63, s61, 2")
    e(f"  s_lshl_b32 s63, s63, s{sSh}")
    e(f"  s_atomic_or s63, s[{sDbg}:{sDbg+1}], s62 glc")
    e(f"  s_mov_b32 s12, s4")
    e(f"  s_mov_b32 s13, s5")
    e(f"  s_branch L_xload")
    e("L_notw0:")
    e(f"  s_mov_b32 s22, 18432")
    e(f"  s_mov_b32 s23, 0x20000")
    e(f"  s_mul_i32 s60, s{sWave}, 5120")
    e(f"  s_sub_u32 s60, s60, 5120")
    e(f"  s_mov_b32 m0, s60")
    e(f"  s_waitcnt lgkmcnt(0)")
    e(f"  s_barrier")
    e(f"  s_mov_b32 s20, s8")
    e(f"  s_mov_b32 s21, s9")
    e(f"  s_mov_b32 s12, s4")
    e(f"  s_mov_b32 s13, s5")
    e(f"  s_cmp_gt_u32 s{sWave}, 4")
    e(f"  s_cbranch_scc1 L_xload")
    for k in range(3):
        e(f"  buffer_load_dwordx4 v{vD0}, s[20:23], s60 offen offset:{k*1024} lds")
    e(f"  s_cmp_eq_u32 s{sWave}, 4")
    e(f"  s_cbranch_scc1 L_dw")
    e(f"  buffer_load_dwordx4 v{vD0}, s[20:23], s60 offen offset:3072 lds")
    e(f"  s_add_u32 s60, s60, 4096")
    e(f"  s_mov_b32 m0, s60")
    e(f"  s_nop 0")
    e(f"  buffer_load_dwordx4 v{vD0}, s[20:23], s60 offen lds")
    e(f"  s_branch L_xload")
    e("L_dw:")
    e(f"  s_mov_b32 m0, {DWA}")
    e(f"  s_mov_b32 s20, s6")
    e(f"  s_mov_b32 s21, s7")
    e(f"  s_mov_b32 s22, 192")
    e(f"  buffer_load_dwordx4 v{vD0}, s[20:23], 0 offen lds")
    e("L_xload:")
    e(f"  s_mov_b32 s{sSlot}, s{sRingLo}")
    for k in range(D):
        e(f"  s_mov_b32 m0, s{sSlot}")
        e(f"  s_add_u32 s{sSlot}, s{sSlot}, {TILE}")
        loads(sQ+k)
    stamp(1) if False else None
    e(f"  s_mov_b32 s{sRingHi}, s{sSlot}")
    e(f"  s_mov_b32 s{sSlot}, s{sRingLo}")
    e(f"  s_mov_b32 s16, s10")
    e(f"  s_mov_b32 s17, s11")
    e(f"  s_mov_b32 s18, {TOTAL}")
    e(f"  s_mov_b32 s19, 0x20000")
    e(f"  s_mov_b32 s{sMask}, 0xffff0000")
    e(f"  s_mov_b32 s{sI}, 0")
    e(f"  s_mov_b32 s{sCls}, 2")
    if not dyn:
        e(f"  s_add_u32 s{sN}, s{sWave}, {8*(D-1)}")
    t0, t1, t2 = TMP, TMP+1, TMP+2
    e(f"  s_mul_i32 s{sT}, s{sWave}, {TILE}")
    e(f"  s_add_u32 s{sT}, s{sT}, {OUTA}")
    e(f"  v_mov_b32 v{vONE}, 1")
    e(f"  v_and_b32 v{vT}, 48, v0              ; g*16")
    e(f"  v_and_b32 v{t0}, 15, v0              ; j")
    e(f"  v_mul_u32_u24 v{t1}, 192, v{t0}      ; j*192")
    e(f"  v_and_b32 v{t2}, 8, v0")
    e(f"  v_lshlrev_b32 v{t2}, 2, v{t2}        ; f(j)*16 = (j&8)<<2")
    e(f"  v_xor_b32 v{t2}, v{t2}, v{vT}        ; (g^f)*16")
    e(f"  v_add_u32 v{vBB}, v{t1}, v{t2}")
    e(f"  v_and_b32 v{t2}, 6, v0")
    e(f"  v_lshlrev_b32 v{t2}, 3, v{t2}        ; fo(j)*16 = ((j>>1)&3)<<4")
    e(f"  v_xor_b32 v{t2}, v{t2}, v{vT}")
    e(f"  v_add3_u32 v{vOW}, v{t1}, v{t2}, s{sT}")
    for q, vr in enumerate((vOR0, vOR1, vOR2)):
        e(f"  v_add_u32 v{t0}, {q*64}, v0          ; P")
        e(f"  v_mul_u32_u24 v{t1}, 171, v{t0}")
        e(f"  v_bfe_u32 v{t1}, v{t1}, 12, 2        ; ((P/12)>>1)&3")
        e(f"  v_xor_b32 v{t0}, v{t0}, v{t1}")
        e(f"  v_lshl_add_u32 v{vr}, v{t0}, 4, s{sT}")
    e(f"  v_lshrrev_b32 v{t0}, 1, v{vT}        ; 8g")
    e(f"  v_bfe_u32 v{t1}, v0, 2, 2            ; r'")
    e(f"  v_add_u32 v{t0}, v{t0}, v{t1}")
    e(f"  v_mul_u32_u24 v{t0}, 192, v{t0}")
    e(f"  v_and_b32 v{t1}, 3, v0")
    e(f"  v_lshl_add_u32 v{t0}, v{t1}, 4, v{t0}")
    e(f"  s_waitcnt vmcnt({3*D})")
    if stamps:
        e(f"  s_cmp_eq_u32 s{sWave}, 0")
        e(f"  s_cbranch_scc1 L_st2")
        stamp(2)
        e("L_st2:")
    e(f"  s_barrier                             ; barrier 1")
    for s in range(3):
        e(f"  ds_read_b128 v[{R+4*s}:{R+4*s+3}], v{vT} offset:{DWA+s*64}")
    for s in range(3):
        for n in range(6):
            m, b = n >> 1, n & 1
            for u in range(2):
                r = WT + (n*3+s)*4 + 2*u
                e(f"  ds_read_b64_tr_b16 v[{r}:{r+1}], v{t0} offset:{WTA + s*6144 + u*768 + m*64 + b*8}")
    e(f"  s_waitcnt lgkmcnt(0)")
    for w in range(12):
        e(f"  v_lshlrev_b32 v{DW+2*w}, 16, v{R+w}")
        e(f"  v_and_b32 v{DW+2*w+1}, s{sMask}, v{R+w}")
    e(f"  s_cmp_lg_u32 s{sWave}, 0")
    e(f"  s_cbranch_scc1 L_nopub")
    e(f"  s_xor_b32 s{sSh}, s{sSh}, 8")
    e(f"  s_lshr_b32 s63, s63, s{sSh}")
    e(f"  s_xor_b32 s62, s63, 1")
    e(f"  s_and_b32 s62, s62, 1")
    e(f"  s_bitcmp1_b32 s63, 1")
    e(f"  s_cselect_b32 s61, s62, s61")
    e(f"  v_mov_b32 v{TMP}, s61")
    e(f"  ds_write_b32 v{vCTL}, v{TMP} offset:4")
    e("L_nopub:")
    stamp(3)
    if stamps:
        e(f"  s_getreg_b32 s56, hwreg(HW_REG_XCC_ID)")
        e(f"  s_getreg_b32 s57, hwreg(HW_REG_HW_ID)")
        e(f"  v_writelane_b32 v11, s56, 4")
        e(f"  v_writelane_b32 v11, s57, 5")
    seq = [("L", k) for k in range(D)]
    N = []
    for i in range(D+3):
        idx = seq.index(("L", i))
        N.append(3*(len(seq)-1-idx))
        if late:
            seq.append(("S", i)); seq.append(("L", i+D))
        else:
            seq.append(("L", i+D)); seq.append(("S", i))
    while len(N) > 1 and N[-1] == N[-2]: N.pop()
    def grab_issue():
        if dyn:
            e(f"  v_readfirstlane_b32 s{sN}, v{vN}")
        else:
            e(f"  s_add_u32 s{sN}, s{sN}, 8")
        e(f"  s_cmp_eq_u32 s{sCls}, 2")
        e(f"  s_cbranch_scc1 L_poll")
        e("L_polled:")
        tileoff(sQ+D, sN, sCls)
        e(f"  s_cmp_ge_u32 s{sN}, {8*T}")
        e(f"  s_cbranch_scc1 L_nomore")
        loads(sQ+D)
        e("L_issued:")
    e(f"  s_mov_b32 s{sBC}, {N[0]}")
    e(f"  s_mov_b32 s{sND}, 0")
    e("L_loop:")
    e(f"  v_add_u32 v{vBR}, s{sSlot}, v{vBB}")
    if dyn:
        e(f"  s_mov_b64 exec, 1")
        e(f"  ds_add_rtn_u32 v{vN}, v{vCTL}, v{vONE}")
        e(f"  s_mov_b64 exec, -1")
    for a, b in zip(N, N[1:]): assert b == a + 3
    e(f"  s_sub_u32 s{sT}, s{sBC}, s{sND}")
    e(f"  s_cmp_lg_u32 s{sT}, {N[-1]}")
    e(f"  s_cbranch_scc1 L_wait")
    e(f"  s_waitcnt vmcnt({N[-1]})")
    e("L_body:")
    stamp(8, sI)
    for s in range(3):
        e(f"  ds_read_b128 v[{B+4*s}:{B+4*s+3}], v{vBR} offset:{s*64}")
    e(f"  s_mov_b32 m0, s{sSlot}")
    e(f"  s_add_u32 s{sSlot}, s{sSlot}, {TILE}")
    e(f"  s_cmp_eq_u32 s{sSlot}, s{sRingHi}")
    e(f"  s_cselect_b32 s{sSlot}, s{sRingLo}, s{sSlot}")
    if late:
        e(f"  s_waitcnt lgkmcnt(2)")
    else:
        e(f"  s_waitcnt lgkmcnt(0)")
        grab_issue()
    def scale(s):
        ops = []
        for w in range(4):
            x = B+4*s+w
            d = DW + 2*(4*s+w)
            ta = TMP + 2*(w & 1)
            ops.append(f"  v_lshlrev_b32 v{ta}, 16, v{x}")
            ops.append(f"  v_and_b32 v{ta+1}, s{sMask}, v{x}")
            ops.append(f"  v_mul_f32 v{ta}, v{ta}, v{d}")
            ops.append(f"  v_mul_f32 v{ta+1}, v{ta+1}, v{d+1}")
            ops.append(f"  v_cvt_pk_bf16_f32 v{x}, v{ta}, v{ta+1}")
        return ops
    def mfma(s, n):
        a = WT + (n*3+s)*4
        c = "0" if s == 0 else f"v[{ACC+4*n}:{ACC+4*n+3}]"
        return f"  v_mfma_f32_16x16x32_bf16 v[{ACC+4*n}:{ACC+4*n+3}], v[{a}:{a+3}], v[{B+4*s}:{B+4*s+3}], {c}"
    for x in scale(0): e(x)
    if late: e(f"  s_waitcnt lgkmcnt(0)")
    for s in range(3):
        nxt = scale(s+1) if s < 2 else []
        pre = nxt[:2]; nxt = nxt[2:]
        if pre:
            for x in pre: e(x)
        else:
            e("  s_nop 1")
        per = -(-len(nxt)//6)
        for n in range(6):
            e(mfma(s, n))
            for x in nxt[n*per:(n+1)*per]: e(x)
    e("  s_nop 2")
    for m in range(3):
        for b in range(2):
            n = 2*m+b
            e(f"  v_cvt_pk_bf16_f32 v{O+4*m+2*b}, v{ACC+4*n}, v{ACC+4*n+1}")
            e(f"  v_cvt_pk_bf16_f32 v{O+4*m+2*b+1}, v{ACC+4*n+2}, v{ACC+4*n+3}")
        e(f"  ds_write_b128 v{vOW}, v[{O+4*m}:{O+4*m+3}] offset:{m*64}")
    e(f"  s_waitcnt lgkmcnt(0)")
    for q, vr in enumerate((vOR0, vOR1, vOR2)):
        e(f"  ds_read_b128 v[{R+4*q}:{R+4*q+3}], v{vr}")
    for q in range(3):
        e(f"  s_waitcnt lgkmcnt({2-q})")
        e(f"  buffer_store_dwordx4 v[{R+4*q}:{R+4*q+3}], v{vD0}, s[16:19], s{sQ} offen offset:{q*1024} {stf}")
    stamp(32, sI)
    if late: grab_issue()
    for k in range(D):
        e(f"  s_mov_b32 s{sQ+k}, s{sQ+k+1}")
    if stamps: e(f"  s_add_u32 s{sI}, s{sI}, 1")
    e(f"  s_add_u32 s{sBC}, s{sBC}, 3")
    e(f"  s_min_u32 s{sBC}, s{sBC}, {N[-1]}")
    e(f"  s_cmp_lt_u32 s{sQ}, {TOTAL}")
    e(f"  s_cbranch_scc1 L_loop")
    if stamps:
        stamp(6)
        e(f"  s_waitcnt vmcnt(0)")
        stamp(7)
        e(f"  v_writelane_b32 v11, s{sCls}, 58")
        e(f"  v_writelane_b32 v11, s{sI}, 1")
        e(f"  s_mul_i32 s{sT}, s2, {W}")
        e(f"  s_add_u32 s{sT}, s{sT}, s{sWave}")
        e(f"  s_lshl_b32 s{sT}, s{sT}, 8")
        e(f"  v_lshlrev_b32 v{TMP}, 2, v0")
        e(f"  v_add_u32 v{TMP}, s{sT}, v{TMP}")
        e(f"  global_store_dword v{TMP}, v11, s[52:53]")
    e("L_end:")
    e("  s_endpgm")
    e("L_wait:")
    for n in range(N[-1]-3, 0, -3):
        e(f"  s_waitcnt vmcnt({n})")
        e(f"  s_cmp_eq_u32 s{sT}, {n}")
        e(f"  s_cbranch_scc1 L_body")
    e(f"  s_waitcnt vmcnt(0)")
    e(f"  s_branch L_body")
    e("L_nomore:")
    e(f"  s_mov_b32 s{sQ+D}, {TOTAL}")
    e(f"  s_add_u32 s{sND}, s{sND}, 3")
    e(f"  s_branch L_issued")
    e("L_poll:")
    e(f"  ds_read_b32 v{TMP}, v{vCTL} offset:4")
    e(f"  s_waitcnt lgkmcnt(0)")
    e(f"  v_readfirstlane_b32 s{sCls}, v{TMP}")
    e(f"  s_cmp_eq_u32 s{sCls}, 2")
    e(f"  s_cbranch_scc1 L_poll")
    e(f"  s_branch L_polled")
    e('.section .rodata,"a"')
    e(".p2align 6")
    e(f".amdhsa_kernel {NAME}")
    e(f"  .amdhsa_next_free_vgpr {NV}")
    e(f"  .amdhsa_next_free_sgpr 80")
    e(f"  .amdhsa_accum_offset {(NV+3)//4*4}")
    e("  .amdhsa_group_segment_fixed_size 0")
    e("  .amdhsa_kernarg_size 48")
    e("  .amdhsa_user_sgpr_count 2")
    e("  .amdhsa_user_sgpr_kernarg_segment_ptr 1")
    e("  .amdhsa_system_sgpr_workgroup_id_x 1")
    e("  .amdhsa_float_denorm_mode_32 3")
    e(".end_amdhsa_kernel")
    return "\n".join(o) + "\n"

if __name__ == "__main__":
    ap = argparse.ArgumentParser()
    ap.add_argument("-o", required=True)
    ap.add_argument("--G", type=int, default=16)
    ap.add_argument("--D", type=int, default=2)
    ap.add_argument("--early", action="store_true")
    ap.add_argument("--static", action="store_true")
    ap.add_argument("--thr", type=int, default=16)
    ap.add_argument("--ldf", default="nt")
    ap.add_argument("--stf", default="sc0 sc1")
    ap.add_argument("--force", type=int, default=None)
    ap.add_argument("--stamps", action="store_true")
    a = ap.parse_args()
    open(a.o, "w").write(gen(a.G, a.D, not a.early, not a.static, a.thr, a.ldf, a.stf, a.force, a.stamps))
```

```python
import sys, argparse
from gen1 import HEADER, NAME, TOTAL, TILE

def gen(G=16, D=2, late=True, dyn=True, thr=16, ldf="nt", stf="sc0 sc1", force=None, stamps=False, lds_min=90000, noloc=False, diag=None):
    W = 8; NWG = 256; T = 8
    SPAN = 16*TILE
    STEP = G*SPAN
    WTA = 0
    DWA = 18432
    OUTA = 20480
    RING = OUTA + W*TILE
    CTL = RING + W*D*TILE
    lds = max(CTL + 64, lds_min)
    assert lds <= 163840
    o = []
    e = o.append
    e(HEADER + f"; @launch grid=({NWG},1,1) block=({W*64},1,1) lds={lds}")
    e('.amdgcn_target "amdgcn-amd-amdhsa--gfx950"')
    e(".text")
    e(f".globl {NAME}")
    e(".p2align 8")
    e(f".type {NAME},@function")
    e(f"{NAME}:")
    vD0, vD1, vD2, vBR, vBB, vOW, vOR0, vOR1, vOR2, vT = 1,2,3,4,5,6,7,8,9,10
    B = 12; ACC = 24; O = 48; R = 60; DW = 72; TMP = 96; WT = 100; vCTL = 172; vONE = 173; vN = 174
    NV = 175
    sWave, sBase, sI, sSlot, sMask, sRingLo, sRingHi, sT, sU, sCls, sM, sSh, sN, sSpan = 28,29,30,31,32,33,34,35,36,37,38,39,40,41
    sP = 42; sBC = 43; sND = 46
    sDbg = 44
    sQ = 64
    def stamp(j, dynr=None):
        if not stamps: return
        e(f"  s_memrealtime s[48:49]")
        if dynr is not None:
            e(f"  s_add_u32 s50, s{dynr}, {j}")
            e(f"  s_mov_b32 s51, m0")
            e(f"  s_mov_b32 m0, s50")
        e(f"  s_waitcnt lgkmcnt(0)")
        if dynr is not None:
            e(f"  v_writelane_b32 v11, s48, m0")
            e(f"  s_mov_b32 m0, s51")
        else:
            e(f"  v_writelane_b32 v11, s48, {j}")
    def tileoff(dst, sn, scls):
        e(f"  s_lshr_b32 s{sSpan}, s{sn}, 3")
        e(f"  s_mul_i32 s{sSpan}, s{sSpan}, {STEP}")
        e(f"  s_add_u32 s{sSpan}, s{sSpan}, s{sBase}")
        e(f"  s_lshl_b32 s{sT}, s{sn}, 2")
        e(f"  s_lshr_b32 s{sT}, 0xcb756210, s{sT}")
        e(f"  s_add_u32 s{sU}, s{sSpan}, {SPAN//2}")
        e(f"  s_lshr_b32 s{sU}, s{sU}, 21")
        e(f"  s_xor_b32 s{sU}, s{sU}, s{scls}")
        e(f"  s_lshl_b32 s{sU}, s{sU}, 3")
        e(f"  s_xor_b32 s{sT}, s{sT}, s{sU}")
        e(f"  s_and_b32 s{sT}, s{sT}, 15")
        e(f"  s_mul_i32 s{sT}, s{sT}, {TILE}")
        e(f"  s_add_u32 s{dst}, s{sT}, s{sSpan}")
    def loads(so):
        for q, vd in enumerate((vD0, vD1, vD2)):
            e(f"  buffer_load_dwordx4 v{vd}, s[12:15], s{so} offen offset:{q*1024} {ldf} lds")
    e(f"  s_cmp_ge_u32 s2, {NWG}")
    e(f"  s_cbranch_scc1 L_end")
    if stamps: e("  v_mov_b32 v11, 0")
    stamp(0)
    if diag is not None:
        e(f"  s_memrealtime s[70:71]")
        e(f"  s_load_dwordx2 s[52:53], s[0:1], 40")
    e(f"  s_load_dwordx8 s[4:11], s[0:1], 0")
    e(f"  s_load_dwordx2 s[{sDbg}:{sDbg+1}], s[0:1], 32")
    if stamps: e(f"  s_load_dwordx2 s[52:53], s[0:1], 40")
    e(f"  v_lshrrev_b32 v{vT}, 6, v0")
    e(f"  v_and_b32 v0, 63, v0                 ; lane")
    e(f"  v_readfirstlane_b32 s{sWave}, v{vT}")
    e(f"  v_lshlrev_b32 v{vD0}, 4, v0          ; l*16")
    e(f"  v_xor_b32 v{vD2}, 32, v{vD0}         ; (l^2)*16")
    e(f"  v_and_b32 v{vT}, 32, v0")
    e(f"  v_xor_b32 v{vD1}, v{vT}, v{vD0}      ; l>=32 ? (l^2)*16 : l*16")
    e(f"  s_lshr_b32 s{sT}, s2, 3")
    e(f"  s_lshl_b32 s{sT}, s{sT}, 2")
    e(f"  s_and_b32 s{sP}, s2, 3")
    e(f"  s_or_b32 s{sP}, s{sP}, s{sT}")
    e(f"  s_bfe_u32 s{sM}, s2, 0x10002")
    e(f"  s_and_b32 s{sBase}, s{sP}, {G-1}")
    e(f"  s_andn2_b32 s{sT}, s{sP}, {G-1}")
    e(f"  s_lshl_b32 s{sT}, s{sT}, 3            ; group*G*T")
    e(f"  s_add_u32 s{sBase}, s{sBase}, s{sT}")
    e(f"  s_mul_i32 s{sBase}, s{sBase}, {SPAN}")
    e(f"  s_lshr_b32 s{sCls}, s{sWave}, 2")
    e(f"  s_xor_b32 s{sCls}, s{sCls}, s{sM}")
    tileoff(sQ, sWave, sCls)
    for k in range(1, D):
        e(f"  s_add_u32 s{sQ+k}, s{sQ+k-1}, {STEP}")
    e(f"  s_mul_i32 s{sRingLo}, s{sWave}, {D*TILE}")
    e(f"  s_add_u32 s{sRingLo}, s{sRingLo}, {RING}")
    e(f"  s_mov_b32 s14, {TOTAL}")
    e(f"  s_mov_b32 s15, 0x20000")
    e(f"  v_mov_b32 v{vCTL}, {CTL}")
    e(f"  s_cmp_lg_u32 s{sWave}, 0")
    e(f"  s_cbranch_scc1 L_notw0")
    e(f"  v_mov_b32 v{TMP}, {8*D}")
    e(f"  v_mov_b32 v{TMP+1}, 2")
    e(f"  ds_write_b64 v{vCTL}, v[{TMP}:{TMP+1}]")
    e(f"  s_add_u32 s60, s{sBase}, {(T-1)*STEP}")
    e(f"  s_lshl_b32 s61, s{sM}, 10")
    e(f"  s_add_u32 s60, s60, s61")
    e(f"  s_lshl_b32 s61, s{sP}, 13")
    e(f"  s_and_b32 s61, s61, 8192")
    e(f"  s_add_u32 s60, s60, s61")
    e(f"  v_mov_b32 v{TMP+2}, s60")
    e(f"  v_xor_b32 v{TMP+3}, 8192, v{TMP+2}")
    e(f"  s_and_b32 s{sSh}, s{sP}, 1")
    e(f"  s_lshl_b32 s{sSh}, s{sSh}, 1")
    e(f"  s_or_b32 s{sSh}, s{sSh}, s{sM}")
    e(f"  s_lshl_b32 s{sSh}, s{sSh}, 3")
    e(f"  s_lshr_b32 s62, s{sP}, 1")
    e(f"  s_lshl_b32 s62, s62, 2")
    e(f"  s_mov_b64 exec, 1")
    e(f"  s_branch L_probe")
    e(".p2align 6")
    e("L_probe:")
    e(f"  s_waitcnt lgkmcnt(0)")
    e(f"  s_barrier")
    e(f"  global_load_dword v{TMP}, v{TMP+2}, s[4:5]")
    e(f"  global_load_dword v{TMP+1}, v{TMP+3}, s[4:5]")
    e(f"  s_waitcnt vmcnt(1)")
    e(f"  s_memtime s[54:55]")
    e(f"  s_waitcnt vmcnt(0)")
    e(f"  s_memtime s[56:57]")
    e(f"  s_mov_b64 exec, -1")
    e(f"  s_lshr_b32 s61, s60, 8")
    e(f"  s_xor_b32 s60, s60, s61")
    e(f"  s_waitcnt lgkmcnt(0)")
    e(f"  s_sub_u32 s61, s56, s54")
    if stamps:
        e(f"  v_writelane_b32 v11, s61, 56")
        e(f"  s_lshr_b32 s63, s60, 13")
        e(f"  v_writelane_b32 v11, s63, 63")
    if force is None:
        e(f"  s_cmp_lt_u32 s61, {thr}")
        e(f"  s_cselect_b32 s61, 8192, 0")
        e(f"  s_xor_b32 s61, s61, s60")
        e(f"  s_bfe_u32 s61, s61, 0x1000d")
    else:
        e(f"  s_getreg_b32 s61, hwreg(HW_REG_XCC_ID)")
        e(f"  s_bfe_u32 s61, s61, 0x10002")
        e(f"  s_xor_b32 s61, s61, {force}")
    if stamps: e(f"  v_writelane_b32 v11, s61, 57")
    e(f"  s_or_b32 s63, s61, 2")
    e(f"  s_lshl_b32 s63, s63, s{sSh}")
    e(f"  s_atomic_or s63, s[{sDbg}:{sDbg+1}], s62 glc")
    e(f"  s_mov_b32 s12, s4")
    e(f"  s_mov_b32 s13, s5")
    e(f"  s_branch L_xload")
    e("L_notw0:")
    e(f"  s_mov_b32 s22, 18432")
    e(f"  s_mov_b32 s23, 0x20000")
    e(f"  s_mul_i32 s60, s{sWave}, 5120")
    e(f"  s_sub_u32 s60, s60, 5120")
    e(f"  s_mov_b32 m0, s60")
    e(f"  s_waitcnt lgkmcnt(0)")
    e(f"  s_barrier")
    e(f"  s_mov_b32 s20, s8")
    e(f"  s_mov_b32 s21, s9")
    e(f"  s_mov_b32 s12, s4")
    e(f"  s_mov_b32 s13, s5")
    e(f"  s_cmp_gt_u32 s{sWave}, 4")
    e(f"  s_cbranch_scc1 L_xload")
    for k in range(3):
        e(f"  buffer_load_dwordx4 v{vD0}, s[20:23], s60 offen offset:{k*1024} lds")
    e(f"  s_cmp_eq_u32 s{sWave}, 4")
    e(f"  s_cbranch_scc1 L_dw")
    e(f"  buffer_load_dwordx4 v{vD0}, s[20:23], s60 offen offset:3072 lds")
    e(f"  s_add_u32 s60, s60, 4096")
    e(f"  s_mov_b32 m0, s60")
    e(f"  s_nop 0")
    e(f"  buffer_load_dwordx4 v{vD0}, s[20:23], s60 offen lds")
    e(f"  s_branch L_xload")
    e("L_dw:")
    e(f"  s_mov_b32 m0, {DWA}")
    e(f"  s_mov_b32 s20, s6")
    e(f"  s_mov_b32 s21, s7")
    e(f"  s_mov_b32 s22, 192")
    e(f"  buffer_load_dwordx4 v{vD0}, s[20:23], 0 offen lds")
    e("L_xload:")
    e(f"  s_mov_b32 s{sSlot}, s{sRingLo}")
    for k in range(D):
        e(f"  s_mov_b32 m0, s{sSlot}")
        e(f"  s_add_u32 s{sSlot}, s{sSlot}, {TILE}")
        loads(sQ+k)
    stamp(1) if False else None
    e(f"  s_mov_b32 s{sRingHi}, s{sSlot}")
    e(f"  s_mov_b32 s{sSlot}, s{sRingLo}")
    e(f"  s_mov_b32 s16, s10")
    e(f"  s_mov_b32 s17, s11")
    e(f"  s_mov_b32 s18, {TOTAL}")
    e(f"  s_mov_b32 s19, 0x20000")
    e(f"  s_mov_b32 s{sMask}, 0xffff0000")
    e(f"  s_mov_b32 s{sI}, 0")
    e(f"  s_mov_b32 s{sCls}, 2")
    if not dyn:
        e(f"  s_add_u32 s{sN}, s{sWave}, {8*(D-1)}")
    t0, t1, t2 = TMP, TMP+1, TMP+2
    e(f"  s_mul_i32 s{sT}, s{sWave}, {TILE}")
    e(f"  s_add_u32 s{sT}, s{sT}, {OUTA}")
    e(f"  v_mov_b32 v{vONE}, 1")
    e(f"  v_and_b32 v{vT}, 48, v0              ; g*16")
    e(f"  v_and_b32 v{t0}, 15, v0              ; j")
    e(f"  v_mul_u32_u24 v{t1}, 192, v{t0}      ; j*192")
    e(f"  v_and_b32 v{t2}, 8, v0")
    e(f"  v_lshlrev_b32 v{t2}, 2, v{t2}        ; f(j)*16 = (j&8)<<2")
    e(f"  v_xor_b32 v{t2}, v{t2}, v{vT}        ; (g^f)*16")
    e(f"  v_add_u32 v{vBB}, v{t1}, v{t2}")
    e(f"  v_and_b32 v{t2}, 6, v0")
    e(f"  v_lshlrev_b32 v{t2}, 3, v{t2}        ; fo(j)*16 = ((j>>1)&3)<<4")
    e(f"  v_xor_b32 v{t2}, v{t2}, v{vT}")
    e(f"  v_add3_u32 v{vOW}, v{t1}, v{t2}, s{sT}")
    for q, vr in enumerate((vOR0, vOR1, vOR2)):
        e(f"  v_add_u32 v{t0}, {q*64}, v0          ; P")
        e(f"  v_mul_u32_u24 v{t1}, 171, v{t0}")
        e(f"  v_bfe_u32 v{t1}, v{t1}, 12, 2        ; ((P/12)>>1)&3")
        e(f"  v_xor_b32 v{t0}, v{t0}, v{t1}")
        e(f"  v_lshl_add_u32 v{vr}, v{t0}, 4, s{sT}")
    e(f"  v_lshrrev_b32 v{t0}, 1, v{vT}        ; 8g")
    e(f"  v_bfe_u32 v{t1}, v0, 2, 2            ; r'")
    e(f"  v_add_u32 v{t0}, v{t0}, v{t1}")
    e(f"  v_mul_u32_u24 v{t0}, 192, v{t0}")
    e(f"  v_and_b32 v{t1}, 3, v0")
    e(f"  v_lshl_add_u32 v{t0}, v{t1}, 4, v{t0}")
    e(f"  s_waitcnt vmcnt({3*D})")
    if stamps:
        e(f"  s_cmp_eq_u32 s{sWave}, 0")
        e(f"  s_cbranch_scc1 L_st2")
        stamp(2)
        e("L_st2:")
    e(f"  s_barrier                             ; barrier 1")
    for s in range(3):
        e(f"  ds_read_b128 v[{R+4*s}:{R+4*s+3}], v{vT} offset:{DWA+s*64}")
    for s in range(3):
        for n in range(6):
            m, b = n >> 1, n & 1
            for u in range(2):
                r = WT + (n*3+s)*4 + 2*u
                e(f"  ds_read_b64_tr_b16 v[{r}:{r+1}], v{t0} offset:{WTA + s*6144 + u*768 + m*64 + b*8}")
    e(f"  s_waitcnt lgkmcnt(0)")
    for w in range(12):
        e(f"  v_lshlrev_b32 v{DW+2*w}, 16, v{R+w}")
        e(f"  v_and_b32 v{DW+2*w+1}, s{sMask}, v{R+w}")
    e(f"  s_cmp_lg_u32 s{sWave}, 0")
    e(f"  s_cbranch_scc1 L_nopub")
    e(f"  s_xor_b32 s{sSh}, s{sSh}, 8")
    e(f"  s_lshr_b32 s63, s63, s{sSh}")
    e(f"  s_xor_b32 s62, s63, 1")
    e(f"  s_and_b32 s62, s62, 1")
    e(f"  s_bitcmp1_b32 s63, 1")
    e(f"  s_cselect_b32 s61, s62, s61")
    e(f"  v_mov_b32 v{TMP}, s61")
    e(f"  ds_write_b32 v{vCTL}, v{TMP} offset:4")
    e("L_nopub:")
    if diag is not None:
        e(f"  s_memrealtime s[72:73]")
        e(f"  s_waitcnt lgkmcnt(0)")
    stamp(3)
    if stamps:
        e(f"  s_getreg_b32 s56, hwreg(HW_REG_XCC_ID)")
        e(f"  s_getreg_b32 s57, hwreg(HW_REG_HW_ID)")
        e(f"  v_writelane_b32 v11, s56, 4")
        e(f"  v_writelane_b32 v11, s57, 5")
    seq = [("L", k) for k in range(D)]
    N = []
    for i in range(D+3):
        idx = seq.index(("L", i))
        N.append(3*(len(seq)-1-idx))
        if late:
            seq.append(("S", i)); seq.append(("L", i+D))
        else:
            seq.append(("L", i+D)); seq.append(("S", i))
    while len(N) > 1 and N[-1] == N[-2]: N.pop()
    def grab_issue():
        if dyn:
            e(f"  v_readfirstlane_b32 s{sN}, v{vN}")
        else:
            e(f"  s_add_u32 s{sN}, s{sN}, 8")
        e(f"  s_cmp_eq_u32 s{sCls}, 2")
        e(f"  s_cbranch_scc1 L_poll")
        e("L_polled:")
        tileoff(sQ+D, sN, sCls)
        e(f"  s_cmp_ge_u32 s{sN}, {8*T}")
        e(f"  s_cbranch_scc1 L_nomore")
        loads(sQ+D)
        e("L_issued:")
    e(f"  s_mov_b32 s{sBC}, {N[0]}")
    e(f"  s_mov_b32 s{sND}, 0")
    e("L_loop:")
    e(f"  v_add_u32 v{vBR}, s{sSlot}, v{vBB}")
    if dyn:
        e(f"  s_mov_b64 exec, 1")
        e(f"  ds_add_rtn_u32 v{vN}, v{vCTL}, v{vONE}")
        e(f"  s_mov_b64 exec, -1")
    for a, b in zip(N, N[1:]): assert b == a + 3
    e(f"  s_sub_u32 s{sT}, s{sBC}, s{sND}")
    e(f"  s_cmp_lg_u32 s{sT}, {N[-1]}")
    e(f"  s_cbranch_scc1 L_wait")
    e(f"  s_waitcnt vmcnt({N[-1]})")
    e("L_body:")
    stamp(8, sI)
    for s in range(3):
        e(f"  ds_read_b128 v[{B+4*s}:{B+4*s+3}], v{vBR} offset:{s*64}")
    e(f"  s_mov_b32 m0, s{sSlot}")
    e(f"  s_add_u32 s{sSlot}, s{sSlot}, {TILE}")
    e(f"  s_cmp_eq_u32 s{sSlot}, s{sRingHi}")
    e(f"  s_cselect_b32 s{sSlot}, s{sRingLo}, s{sSlot}")
    if late:
        e(f"  s_waitcnt lgkmcnt(2)")
    else:
        e(f"  s_waitcnt lgkmcnt(0)")
        grab_issue()
    def scale(s):
        ops = []
        for w in range(4):
            x = B+4*s+w
            d = DW + 2*(4*s+w)
            ta = TMP + 2*(w & 1)
            ops.append(f"  v_lshlrev_b32 v{ta}, 16, v{x}")
            ops.append(f"  v_and_b32 v{ta+1}, s{sMask}, v{x}")
            ops.append(f"  v_mul_f32 v{ta}, v{ta}, v{d}")
            ops.append(f"  v_mul_f32 v{ta+1}, v{ta+1}, v{d+1}")
            ops.append(f"  v_cvt_pk_bf16_f32 v{x}, v{ta}, v{ta+1}")
        return ops
    def mfma(s, n):
        a = WT + (n*3+s)*4
        c = "0" if s == 0 else f"v[{ACC+4*n}:{ACC+4*n+3}]"
        return f"  v_mfma_f32_16x16x32_bf16 v[{ACC+4*n}:{ACC+4*n+3}], v[{a}:{a+3}], v[{B+4*s}:{B+4*s+3}], {c}"
    for x in scale(0): e(x)
    if late: e(f"  s_waitcnt lgkmcnt(0)")
    for s in range(3):
        nxt = scale(s+1) if s < 2 else []
        pre = nxt[:2]; nxt = nxt[2:]
        if pre:
            for x in pre: e(x)
        else:
            e("  s_nop 1")
        per = -(-len(nxt)//6)
        for n in range(6):
            e(mfma(s, n))
            for x in nxt[n*per:(n+1)*per]: e(x)
    e("  s_nop 2")
    for m in range(3):
        for b in range(2):
            n = 2*m+b
            e(f"  v_cvt_pk_bf16_f32 v{O+4*m+2*b}, v{ACC+4*n}, v{ACC+4*n+1}")
            e(f"  v_cvt_pk_bf16_f32 v{O+4*m+2*b+1}, v{ACC+4*n+2}, v{ACC+4*n+3}")
        e(f"  ds_write_b128 v{vOW}, v[{O+4*m}:{O+4*m+3}] offset:{m*64}")
    e(f"  s_waitcnt lgkmcnt(0)")
    for q, vr in enumerate((vOR0, vOR1, vOR2)):
        e(f"  ds_read_b128 v[{R+4*q}:{R+4*q+3}], v{vr}")
    for q in range(3):
        e(f"  s_waitcnt lgkmcnt({2-q})")
        e(f"  buffer_store_dwordx4 v[{R+4*q}:{R+4*q+3}], v{vD0}, s[16:19], s{sQ} offen offset:{q*1024} {stf}")
    stamp(32, sI)
    if late: grab_issue()
    for k in range(D):
        e(f"  s_mov_b32 s{sQ+k}, s{sQ+k+1}")
    if stamps: e(f"  s_add_u32 s{sI}, s{sI}, 1")
    e(f"  s_add_u32 s{sBC}, s{sBC}, 3")
    e(f"  s_min_u32 s{sBC}, s{sBC}, {N[-1]}")
    e(f"  s_cmp_lt_u32 s{sQ}, {TOTAL}")
    e(f"  s_cbranch_scc1 L_loop")
    if stamps:
        stamp(6)
        e(f"  s_waitcnt vmcnt(0)")
        stamp(7)
        e(f"  v_writelane_b32 v11, s{sCls}, 58")
        e(f"  v_writelane_b32 v11, s{sI}, 1")
        e(f"  s_mul_i32 s{sT}, s2, {W}")
        e(f"  s_add_u32 s{sT}, s{sT}, s{sWave}")
        e(f"  s_lshl_b32 s{sT}, s{sT}, 8")
        e(f"  v_lshlrev_b32 v{TMP}, 2, v0")
        e(f"  v_add_u32 v{TMP}, s{sT}, v{TMP}")
        e(f"  global_store_dword v{TMP}, v11, s[52:53]")
    if diag is not None:
        e(f"  s_waitcnt vmcnt(0)")
        e(f"  s_memrealtime s[74:75]")
        e(f"  s_waitcnt lgkmcnt(0)")
        e(f"  s_cmp_lg_u32 s{sWave}, 7")
        e(f"  s_cbranch_scc1 L_dg1")
        e(f"  v_mov_b32 v{R}, s70")
        e(f"  v_mov_b32 v{R+1}, s72")
        e(f"  v_mov_b32 v{R+2}, s74")
        e(f"  v_mov_b32 v{R+3}, s{sCls}")
        e(f"  s_lshl_b32 s{sT}, s2, 4")
        e(f"  v_mov_b32 v{TMP}, s{sT}")
        e(f"  global_store_dwordx4 v{TMP}, v[{R}:{R+3}], s[52:53] sc0 sc1")
        e(f"  s_endpgm")
        e("L_dg1:")
        e(f"  s_or_b32 s{sT}, s{sWave}, s2")
        e(f"  s_cmp_lg_u32 s{sT}, 0")
        e(f"  s_cbranch_scc1 L_end")
        e("L_dg2:")
        e(f"  s_memrealtime s[74:75]")
        e(f"  s_waitcnt lgkmcnt(0)")
        e(f"  s_sub_u32 s{sT}, s74, s70")
        e(f"  s_cmp_lt_u32 s{sT}, 4000")
        e(f"  s_cbranch_scc1 L_dg2")
        for k in range(4):
            e(f"  global_load_dwordx4 v[{ACC+4*k}:{ACC+4*k+3}], v{vD0}, s[52:53] offset:{k*1024} sc0 sc1")
        e(f"  v_lshlrev_b32 v{TMP}, 2, v0")
        e(f"  global_load_dword v{TMP+1}, v{TMP}, s[{sDbg}:{sDbg+1}] sc0 sc1")
        e(f"  s_waitcnt vmcnt(0)")
        e(f"  s_sub_u32 s{sT}, s70, 1000")
        for k in range(4):
            for j in range(3):
                e(f"  v_subrev_u32 v{ACC+4*k+j}, s{sT}, v{ACC+4*k+j}")
            e(f"  v_sub_u32 v{ACC+4*k+3}, v{ACC+4*k+1}, v{ACC+4*k}")
        def red(op, j, dst):
            e(f"  v_{op}_u32 v{R}, v{ACC+j}, v{ACC+4+j}")
            e(f"  v_{op}_u32 v{R}, v{R}, v{ACC+8+j}")
            e(f"  v_{op}_u32 v{R}, v{R}, v{ACC+12+j}")
            e(f"  s_nop 1")
            e(f"  v_readlane_b32 s{dst}, v{R}, 0")
            for l in range(1, 64):
                e(f"  v_readlane_b32 s{sU}, v{R}, {l}")
                sop = {"min":"s_min_u32","max":"s_max_u32","add":"s_add_u32"}[op]
                e(f"  {sop} s{dst}, s{dst}, s{sU}")
        if diag == 0:
            e(f"  s_mov_b32 s76, 0")
        elif diag == 1:
            red("max", 2, 76); red("min", 0, 77); e("  s_sub_u32 s76, s76, s77")
        elif diag == 2:
            red("max", 0, 76); red("min", 0, 77); e("  s_sub_u32 s76, s76, s77")
        elif diag == 3:
            e(f"  v_lshrrev_b32 v{TMP}, 8, v{TMP+1}")
            e(f"  v_xor_b32 v{TMP}, v{TMP}, v{TMP+1}")
            e(f"  v_and_b32 v{TMP+1}, 1, v{TMP}")
            e(f"  v_cmp_eq_u32 vcc, 0, v{TMP+1}")
            e(f"  s_nop 4")
            e(f"  s_bcnt1_i32_b64 s76, vcc")
            e(f"  v_and_b32 v{TMP+1}, 0x10000, v{TMP}")
            e(f"  v_cmp_eq_u32 vcc, 0, v{TMP+1}")
            e(f"  s_nop 4")
            e(f"  s_bcnt1_i32_b64 s77, vcc")
            e(f"  s_add_u32 s76, s76, s77")
            e(f"  s_mul_i32 s76, s76, 10")
        elif diag == 4:
            red("add", 3, 76); e("  s_lshr_b32 s76, s76, 8")
        elif diag == 5:
            red("min", 0, 77); e("  s_sub_u32 s76, 1000, s77")
        elif diag == 6:
            red("add", 2, 76); e("  s_lshr_b32 s76, s76, 8"); red("min", 0, 77); e("  s_sub_u32 s76, s76, s77")
        elif diag == 7:
            red("add", 0, 76); e("  s_lshr_b32 s76, s76, 8"); red("min", 0, 77); e("  s_sub_u32 s76, s76, s77")
        e(f"  s_min_u32 s76, s76, 5000")
        e(f"  s_add_u32 s76, s76, 4500")
        e("L_dg3:")
        e(f"  s_memrealtime s[74:75]")
        e(f"  s_waitcnt lgkmcnt(0)")
        e(f"  s_sub_u32 s{sT}, s74, s70")
        e(f"  s_cmp_lt_u32 s{sT}, s76")
        e(f"  s_cbranch_scc1 L_dg3")
    e("L_end:")
    e("  s_endpgm")
    e("L_wait:")
    for n in range(N[-1]-3, 0, -3):
        e(f"  s_waitcnt vmcnt({n})")
        e(f"  s_cmp_eq_u32 s{sT}, {n}")
        e(f"  s_cbranch_scc1 L_body")
    e(f"  s_waitcnt vmcnt(0)")
    e(f"  s_branch L_body")
    e("L_nomore:")
    e(f"  s_mov_b32 s{sQ+D}, {TOTAL}")
    e(f"  s_add_u32 s{sND}, s{sND}, 3")
    e(f"  s_branch L_issued")
    e("L_poll:")
    e(f"  ds_read_b32 v{TMP}, v{vCTL} offset:4")
    e(f"  s_waitcnt lgkmcnt(0)")
    e(f"  v_readfirstlane_b32 s{sCls}, v{TMP}")
    e(f"  s_cmp_eq_u32 s{sCls}, 2")
    e(f"  s_cbranch_scc1 L_poll")
    e(f"  s_branch L_polled")
    e('.section .rodata,"a"')
    e(".p2align 6")
    e(f".amdhsa_kernel {NAME}")
    e(f"  .amdhsa_next_free_vgpr {NV}")
    e(f"  .amdhsa_next_free_sgpr 80")
    e(f"  .amdhsa_accum_offset {(NV+3)//4*4}")
    e("  .amdhsa_group_segment_fixed_size 0")
    e("  .amdhsa_kernarg_size 48")
    e("  .amdhsa_user_sgpr_count 2")
    e("  .amdhsa_user_sgpr_kernarg_segment_ptr 1")
    e("  .amdhsa_system_sgpr_workgroup_id_x 1")
    e("  .amdhsa_float_denorm_mode_32 3")
    e(".end_amdhsa_kernel")
    return "\n".join(o) + "\n"

if __name__ == "__main__":
    ap = argparse.ArgumentParser()
    ap.add_argument("-o", required=True)
    ap.add_argument("--G", type=int, default=16)
    ap.add_argument("--D", type=int, default=2)
    ap.add_argument("--early", action="store_true")
    ap.add_argument("--static", action="store_true")
    ap.add_argument("--thr", type=int, default=16)
    ap.add_argument("--ldf", default="nt")
    ap.add_argument("--stf", default="sc0 sc1")
    ap.add_argument("--force", type=int, default=None)
    ap.add_argument("--stamps", action="store_true")
    ap.add_argument("--diag", type=int, default=None)
    a = ap.parse_args()
    open(a.o, "w").write(gen(a.G, a.D, not a.early, not a.static, a.thr, a.ldf, a.stf, a.force, a.stamps, diag=a.diag))
```

```python
import sys, argparse
from gen1 import HEADER, NAME, TOTAL, TILE

def gen(G=16, D=2, late=True, dyn=True, thr=16, ldf="nt", stf="sc0 sc1", force=None, stamps=False, lds_min=90000, noloc=False, diag=None):
    W = 8; NWG = 256; T = 8
    SPAN = 16*TILE
    STEP = G*SPAN
    WTA = 0
    DWA = 18432
    OUTA = 20480
    RING = OUTA + W*TILE
    CTL = RING + W*D*TILE
    lds = max(CTL + 64, lds_min)
    assert lds <= 163840
    o = []
    e = o.append
    e(HEADER + f"; @launch grid=({NWG},1,1) block=({W*64},1,1) lds={lds}")
    e('.amdgcn_target "amdgcn-amd-amdhsa--gfx950"')
    e(".text")
    e(f".globl {NAME}")
    e(".p2align 8")
    e(f".type {NAME},@function")
    e(f"{NAME}:")
    vD0, vD1, vD2, vBR, vBB, vOW, vOR0, vOR1, vOR2, vT = 1,2,3,4,5,6,7,8,9,10
    B = 12; ACC = 24; O = 48; R = 60; DW = 72; TMP = 96; WT = 100; vCTL = 172; vONE = 173; vN = 174
    NV = 175
    sWave, sBase, sI, sSlot, sMask, sRingLo, sRingHi, sT, sU, sCls, sM, sSh, sN, sSpan = 28,29,30,31,32,33,34,35,36,37,38,39,40,41
    sP = 42; sBC = 43; sND = 46
    sDbg = 44
    sQ = 64
    def stamp(j, dynr=None):
        if not stamps: return
        e(f"  s_memrealtime s[48:49]")
        if dynr is not None:
            e(f"  s_add_u32 s50, s{dynr}, {j}")
            e(f"  s_mov_b32 s51, m0")
            e(f"  s_mov_b32 m0, s50")
        e(f"  s_waitcnt lgkmcnt(0)")
        if dynr is not None:
            e(f"  v_writelane_b32 v11, s48, m0")
            e(f"  s_mov_b32 m0, s51")
        else:
            e(f"  v_writelane_b32 v11, s48, {j}")
    def tileoff(dst, sn, scls):
        e(f"  s_lshr_b32 s{sSpan}, s{sn}, 3")
        e(f"  s_mul_i32 s{sSpan}, s{sSpan}, {STEP}")
        e(f"  s_add_u32 s{sSpan}, s{sSpan}, s{sBase}")
        e(f"  s_lshl_b32 s{sT}, s{sn}, 2")
        e(f"  s_lshr_b32 s{sT}, 0xcb756210, s{sT}")
        e(f"  s_add_u32 s{sU}, s{sSpan}, {SPAN//2}")
        e(f"  s_lshr_b32 s{sU}, s{sU}, 21")
        e(f"  s_xor_b32 s{sU}, s{sU}, s{scls}")
        e(f"  s_lshl_b32 s{sU}, s{sU}, 3")
        e(f"  s_xor_b32 s{sT}, s{sT}, s{sU}")
        e(f"  s_and_b32 s{sT}, s{sT}, 15")
        e(f"  s_mul_i32 s{sT}, s{sT}, {TILE}")
        e(f"  s_add_u32 s{dst}, s{sT}, s{sSpan}")
    def loads(so):
        for q, vd in enumerate((vD0, vD1, vD2)):
            e(f"  buffer_load_dwordx4 v{vd}, s[12:15], s{so} offen offset:{q*1024} {ldf} lds")
    e(f"  s_cmp_ge_u32 s2, {NWG}")
    e(f"  s_cbranch_scc1 L_end")
    if stamps: e("  v_mov_b32 v11, 0")
    stamp(0)
    if diag is not None:
        e(f"  s_memrealtime s[70:71]")
        e(f"  s_load_dwordx2 s[52:53], s[0:1], 40")
    e(f"  s_load_dwordx8 s[4:11], s[0:1], 0")
    e(f"  s_load_dwordx2 s[{sDbg}:{sDbg+1}], s[0:1], 32")
    if stamps: e(f"  s_load_dwordx2 s[52:53], s[0:1], 40")
    e(f"  v_lshrrev_b32 v{vT}, 6, v0")
    e(f"  v_and_b32 v0, 63, v0                 ; lane")
    e(f"  v_readfirstlane_b32 s{sWave}, v{vT}")
    e(f"  v_lshlrev_b32 v{vD0}, 4, v0          ; l*16")
    e(f"  v_xor_b32 v{vD2}, 32, v{vD0}         ; (l^2)*16")
    e(f"  v_and_b32 v{vT}, 32, v0")
    e(f"  v_xor_b32 v{vD1}, v{vT}, v{vD0}      ; l>=32 ? (l^2)*16 : l*16")
    e(f"  s_lshr_b32 s{sT}, s2, 3")
    e(f"  s_lshl_b32 s{sT}, s{sT}, 2")
    e(f"  s_and_b32 s{sP}, s2, 3")
    e(f"  s_or_b32 s{sP}, s{sP}, s{sT}")
    e(f"  s_bfe_u32 s{sM}, s2, 0x10002")
    e(f"  s_and_b32 s{sBase}, s{sP}, {G-1}")
    e(f"  s_andn2_b32 s{sT}, s{sP}, {G-1}")
    e(f"  s_lshl_b32 s{sT}, s{sT}, 3            ; group*G*T")
    e(f"  s_add_u32 s{sBase}, s{sBase}, s{sT}")
    e(f"  s_mul_i32 s{sBase}, s{sBase}, {SPAN}")
    e(f"  s_lshr_b32 s{sCls}, s{sWave}, 2")
    e(f"  s_xor_b32 s{sCls}, s{sCls}, s{sM}")
    tileoff(sQ, sWave, sCls)
    for k in range(1, D):
        e(f"  s_add_u32 s{sQ+k}, s{sQ+k-1}, {STEP}")
    e(f"  s_mul_i32 s{sRingLo}, s{sWave}, {D*TILE}")
    e(f"  s_add_u32 s{sRingLo}, s{sRingLo}, {RING}")
    e(f"  s_mov_b32 s14, {TOTAL}")
    e(f"  s_mov_b32 s15, 0x20000")
    e(f"  v_mov_b32 v{vCTL}, {CTL}")
    e(f"  s_cmp_lg_u32 s{sWave}, 0")
    e(f"  s_cbranch_scc1 L_notw0")
    e(f"  v_mov_b32 v{TMP}, {8*D}")
    e(f"  v_mov_b32 v{TMP+1}, 2")
    e(f"  ds_write_b64 v{vCTL}, v[{TMP}:{TMP+1}]")
    e(f"  s_add_u32 s60, s{sBase}, {(T-1)*STEP}")
    e(f"  s_lshl_b32 s61, s{sM}, 10")
    e(f"  s_add_u32 s60, s60, s61")
    e(f"  s_lshl_b32 s61, s{sP}, 13")
    e(f"  s_and_b32 s61, s61, 8192")
    e(f"  s_add_u32 s60, s60, s61")
    e(f"  v_mov_b32 v{TMP+2}, s60")
    e(f"  v_xor_b32 v{TMP+3}, 8192, v{TMP+2}")
    e(f"  s_and_b32 s{sSh}, s{sP}, 1")
    e(f"  s_lshl_b32 s{sSh}, s{sSh}, 1")
    e(f"  s_or_b32 s{sSh}, s{sSh}, s{sM}")
    e(f"  s_lshl_b32 s{sSh}, s{sSh}, 3")
    e(f"  s_lshr_b32 s62, s{sP}, 1")
    e(f"  s_lshl_b32 s62, s62, 2")
    e(f"  s_mov_b64 exec, 1")
    e(f"  s_branch L_probe")
    e(".p2align 6")
    e("L_probe:")
    e(f"  s_waitcnt lgkmcnt(0)")
    e(f"  s_barrier")
    e(f"  global_load_dword v{TMP}, v{TMP+2}, s[4:5]")
    e(f"  global_load_dword v{TMP+1}, v{TMP+3}, s[4:5]")
    if diag is not None and diag >= 8: e(f"  s_memtime s[78:79]")
    e(f"  s_waitcnt vmcnt(1)")
    e(f"  s_memtime s[54:55]")
    e(f"  s_waitcnt vmcnt(0)")
    e(f"  s_memtime s[56:57]")
    e(f"  s_mov_b64 exec, -1")
    e(f"  s_lshr_b32 s61, s60, 8")
    e(f"  s_xor_b32 s60, s60, s61")
    e(f"  s_waitcnt lgkmcnt(0)")
    e(f"  s_sub_u32 s61, s56, s54")
    if diag is not None and diag >= 8:
        e(f"  s_sub_u32 s78, s54, s78")
        e(f"  s_mov_b32 s79, s61")
    if stamps:
        e(f"  v_writelane_b32 v11, s61, 56")
        e(f"  s_lshr_b32 s63, s60, 13")
        e(f"  v_writelane_b32 v11, s63, 63")
    if force is None:
        e(f"  s_cmp_lt_u32 s61, {thr}")
        e(f"  s_cselect_b32 s61, 8192, 0")
        e(f"  s_xor_b32 s61, s61, s60")
        e(f"  s_bfe_u32 s61, s61, 0x1000d")
    else:
        e(f"  s_getreg_b32 s61, hwreg(HW_REG_XCC_ID)")
        e(f"  s_bfe_u32 s61, s61, 0x10002")
        e(f"  s_xor_b32 s61, s61, {force}")
    if stamps: e(f"  v_writelane_b32 v11, s61, 57")
    e(f"  s_or_b32 s63, s61, 2")
    e(f"  s_lshl_b32 s63, s63, s{sSh}")
    e(f"  s_atomic_or s63, s[{sDbg}:{sDbg+1}], s62 glc")
    e(f"  s_mov_b32 s12, s4")
    e(f"  s_mov_b32 s13, s5")
    e(f"  s_branch L_xload")
    e("L_notw0:")
    e(f"  s_mov_b32 s22, 18432")
    e(f"  s_mov_b32 s23, 0x20000")
    e(f"  s_mul_i32 s60, s{sWave}, 5120")
    e(f"  s_sub_u32 s60, s60, 5120")
    e(f"  s_mov_b32 m0, s60")
    e(f"  s_waitcnt lgkmcnt(0)")
    e(f"  s_barrier")
    e(f"  s_mov_b32 s20, s8")
    e(f"  s_mov_b32 s21, s9")
    e(f"  s_mov_b32 s12, s4")
    e(f"  s_mov_b32 s13, s5")
    e(f"  s_cmp_gt_u32 s{sWave}, 4")
    e(f"  s_cbranch_scc1 L_xload")
    for k in range(3):
        e(f"  buffer_load_dwordx4 v{vD0}, s[20:23], s60 offen offset:{k*1024} lds")
    e(f"  s_cmp_eq_u32 s{sWave}, 4")
    e(f"  s_cbranch_scc1 L_dw")
    e(f"  buffer_load_dwordx4 v{vD0}, s[20:23], s60 offen offset:3072 lds")
    e(f"  s_add_u32 s60, s60, 4096")
    e(f"  s_mov_b32 m0, s60")
    e(f"  s_nop 0")
    e(f"  buffer_load_dwordx4 v{vD0}, s[20:23], s60 offen lds")
    e(f"  s_branch L_xload")
    e("L_dw:")
    e(f"  s_mov_b32 m0, {DWA}")
    e(f"  s_mov_b32 s20, s6")
    e(f"  s_mov_b32 s21, s7")
    e(f"  s_mov_b32 s22, 192")
    e(f"  buffer_load_dwordx4 v{vD0}, s[20:23], 0 offen lds")
    e("L_xload:")
    e(f"  s_mov_b32 s{sSlot}, s{sRingLo}")
    for k in range(D):
        e(f"  s_mov_b32 m0, s{sSlot}")
        e(f"  s_add_u32 s{sSlot}, s{sSlot}, {TILE}")
        loads(sQ+k)
    stamp(1) if False else None
    e(f"  s_mov_b32 s{sRingHi}, s{sSlot}")
    e(f"  s_mov_b32 s{sSlot}, s{sRingLo}")
    e(f"  s_mov_b32 s16, s10")
    e(f"  s_mov_b32 s17, s11")
    e(f"  s_mov_b32 s18, {TOTAL}")
    e(f"  s_mov_b32 s19, 0x20000")
    e(f"  s_mov_b32 s{sMask}, 0xffff0000")
    e(f"  s_mov_b32 s{sI}, 0")
    e(f"  s_mov_b32 s{sCls}, 2")
    if not dyn:
        e(f"  s_add_u32 s{sN}, s{sWave}, {8*(D-1)}")
    t0, t1, t2 = TMP, TMP+1, TMP+2
    e(f"  s_mul_i32 s{sT}, s{sWave}, {TILE}")
    e(f"  s_add_u32 s{sT}, s{sT}, {OUTA}")
    e(f"  v_mov_b32 v{vONE}, 1")
    e(f"  v_and_b32 v{vT}, 48, v0              ; g*16")
    e(f"  v_and_b32 v{t0}, 15, v0              ; j")
    e(f"  v_mul_u32_u24 v{t1}, 192, v{t0}      ; j*192")
    e(f"  v_and_b32 v{t2}, 8, v0")
    e(f"  v_lshlrev_b32 v{t2}, 2, v{t2}        ; f(j)*16 = (j&8)<<2")
    e(f"  v_xor_b32 v{t2}, v{t2}, v{vT}        ; (g^f)*16")
    e(f"  v_add_u32 v{vBB}, v{t1}, v{t2}")
    e(f"  v_and_b32 v{t2}, 6, v0")
    e(f"  v_lshlrev_b32 v{t2}, 3, v{t2}        ; fo(j)*16 = ((j>>1)&3)<<4")
    e(f"  v_xor_b32 v{t2}, v{t2}, v{vT}")
    e(f"  v_add3_u32 v{vOW}, v{t1}, v{t2}, s{sT}")
    for q, vr in enumerate((vOR0, vOR1, vOR2)):
        e(f"  v_add_u32 v{t0}, {q*64}, v0          ; P")
        e(f"  v_mul_u32_u24 v{t1}, 171, v{t0}")
        e(f"  v_bfe_u32 v{t1}, v{t1}, 12, 2        ; ((P/12)>>1)&3")
        e(f"  v_xor_b32 v{t0}, v{t0}, v{t1}")
        e(f"  v_lshl_add_u32 v{vr}, v{t0}, 4, s{sT}")
    e(f"  v_lshrrev_b32 v{t0}, 1, v{vT}        ; 8g")
    e(f"  v_bfe_u32 v{t1}, v0, 2, 2            ; r'")
    e(f"  v_add_u32 v{t0}, v{t0}, v{t1}")
    e(f"  v_mul_u32_u24 v{t0}, 192, v{t0}")
    e(f"  v_and_b32 v{t1}, 3, v0")
    e(f"  v_lshl_add_u32 v{t0}, v{t1}, 4, v{t0}")
    e(f"  s_waitcnt vmcnt({3*D})")
    if stamps:
        e(f"  s_cmp_eq_u32 s{sWave}, 0")
        e(f"  s_cbranch_scc1 L_st2")
        stamp(2)
        e("L_st2:")
    e(f"  s_barrier                             ; barrier 1")
    for s in range(3):
        e(f"  ds_read_b128 v[{R+4*s}:{R+4*s+3}], v{vT} offset:{DWA+s*64}")
    for s in range(3):
        for n in range(6):
            m, b = n >> 1, n & 1
            for u in range(2):
                r = WT + (n*3+s)*4 + 2*u
                e(f"  ds_read_b64_tr_b16 v[{r}:{r+1}], v{t0} offset:{WTA + s*6144 + u*768 + m*64 + b*8}")
    e(f"  s_waitcnt lgkmcnt(0)")
    for w in range(12):
        e(f"  v_lshlrev_b32 v{DW+2*w}, 16, v{R+w}")
        e(f"  v_and_b32 v{DW+2*w+1}, s{sMask}, v{R+w}")
    e(f"  s_cmp_lg_u32 s{sWave}, 0")
    e(f"  s_cbranch_scc1 L_nopub")
    e(f"  s_xor_b32 s{sSh}, s{sSh}, 8")
    e(f"  s_lshr_b32 s63, s63, s{sSh}")
    e(f"  s_xor_b32 s62, s63, 1")
    e(f"  s_and_b32 s62, s62, 1")
    e(f"  s_bitcmp1_b32 s63, 1")
    e(f"  s_cselect_b32 s61, s62, s61")
    e(f"  v_mov_b32 v{TMP}, s61")
    e(f"  ds_write_b32 v{vCTL}, v{TMP} offset:4")
    e("L_nopub:")
    if diag is not None:
        e(f"  s_memrealtime s[72:73]")
        e(f"  s_waitcnt lgkmcnt(0)")
    stamp(3)
    if stamps:
        e(f"  s_getreg_b32 s56, hwreg(HW_REG_XCC_ID)")
        e(f"  s_getreg_b32 s57, hwreg(HW_REG_HW_ID)")
        e(f"  v_writelane_b32 v11, s56, 4")
        e(f"  v_writelane_b32 v11, s57, 5")
    seq = [("L", k) for k in range(D)]
    N = []
    for i in range(D+3):
        idx = seq.index(("L", i))
        N.append(3*(len(seq)-1-idx))
        if late:
            seq.append(("S", i)); seq.append(("L", i+D))
        else:
            seq.append(("L", i+D)); seq.append(("S", i))
    while len(N) > 1 and N[-1] == N[-2]: N.pop()
    def grab_issue():
        if dyn:
            e(f"  v_readfirstlane_b32 s{sN}, v{vN}")
        else:
            e(f"  s_add_u32 s{sN}, s{sN}, 8")
        e(f"  s_cmp_eq_u32 s{sCls}, 2")
        e(f"  s_cbranch_scc1 L_poll")
        e("L_polled:")
        tileoff(sQ+D, sN, sCls)
        e(f"  s_cmp_ge_u32 s{sN}, {8*T}")
        e(f"  s_cbranch_scc1 L_nomore")
        loads(sQ+D)
        e("L_issued:")
    e(f"  s_mov_b32 s{sBC}, {N[0]}")
    e(f"  s_mov_b32 s{sND}, 0")
    e("L_loop:")
    e(f"  v_add_u32 v{vBR}, s{sSlot}, v{vBB}")
    if dyn:
        e(f"  s_mov_b64 exec, 1")
        e(f"  ds_add_rtn_u32 v{vN}, v{vCTL}, v{vONE}")
        e(f"  s_mov_b64 exec, -1")
    for a, b in zip(N, N[1:]): assert b == a + 3
    e(f"  s_sub_u32 s{sT}, s{sBC}, s{sND}")
    e(f"  s_cmp_lg_u32 s{sT}, {N[-1]}")
    e(f"  s_cbranch_scc1 L_wait")
    e(f"  s_waitcnt vmcnt({N[-1]})")
    e("L_body:")
    stamp(8, sI)
    for s in range(3):
        e(f"  ds_read_b128 v[{B+4*s}:{B+4*s+3}], v{vBR} offset:{s*64}")
    e(f"  s_mov_b32 m0, s{sSlot}")
    e(f"  s_add_u32 s{sSlot}, s{sSlot}, {TILE}")
    e(f"  s_cmp_eq_u32 s{sSlot}, s{sRingHi}")
    e(f"  s_cselect_b32 s{sSlot}, s{sRingLo}, s{sSlot}")
    if late:
        e(f"  s_waitcnt lgkmcnt(2)")
    else:
        e(f"  s_waitcnt lgkmcnt(0)")
        grab_issue()
    def scale(s):
        ops = []
        for w in range(4):
            x = B+4*s+w
            d = DW + 2*(4*s+w)
            ta = TMP + 2*(w & 1)
            ops.append(f"  v_lshlrev_b32 v{ta}, 16, v{x}")
            ops.append(f"  v_and_b32 v{ta+1}, s{sMask}, v{x}")
            ops.append(f"  v_mul_f32 v{ta}, v{ta}, v{d}")
            ops.append(f"  v_mul_f32 v{ta+1}, v{ta+1}, v{d+1}")
            ops.append(f"  v_cvt_pk_bf16_f32 v{x}, v{ta}, v{ta+1}")
        return ops
    def mfma(s, n):
        a = WT + (n*3+s)*4
        c = "0" if s == 0 else f"v[{ACC+4*n}:{ACC+4*n+3}]"
        return f"  v_mfma_f32_16x16x32_bf16 v[{ACC+4*n}:{ACC+4*n+3}], v[{a}:{a+3}], v[{B+4*s}:{B+4*s+3}], {c}"
    for x in scale(0): e(x)
    if late: e(f"  s_waitcnt lgkmcnt(0)")
    for s in range(3):
        nxt = scale(s+1) if s < 2 else []
        pre = nxt[:2]; nxt = nxt[2:]
        if pre:
            for x in pre: e(x)
        else:
            e("  s_nop 1")
        per = -(-len(nxt)//6)
        for n in range(6):
            e(mfma(s, n))
            for x in nxt[n*per:(n+1)*per]: e(x)
    e("  s_nop 2")
    for m in range(3):
        for b in range(2):
            n = 2*m+b
            e(f"  v_cvt_pk_bf16_f32 v{O+4*m+2*b}, v{ACC+4*n}, v{ACC+4*n+1}")
            e(f"  v_cvt_pk_bf16_f32 v{O+4*m+2*b+1}, v{ACC+4*n+2}, v{ACC+4*n+3}")
        e(f"  ds_write_b128 v{vOW}, v[{O+4*m}:{O+4*m+3}] offset:{m*64}")
    e(f"  s_waitcnt lgkmcnt(0)")
    for q, vr in enumerate((vOR0, vOR1, vOR2)):
        e(f"  ds_read_b128 v[{R+4*q}:{R+4*q+3}], v{vr}")
    for q in range(3):
        e(f"  s_waitcnt lgkmcnt({2-q})")
        e(f"  buffer_store_dwordx4 v[{R+4*q}:{R+4*q+3}], v{vD0}, s[16:19], s{sQ} offen offset:{q*1024} {stf}")
    stamp(32, sI)
    if late: grab_issue()
    for k in range(D):
        e(f"  s_mov_b32 s{sQ+k}, s{sQ+k+1}")
    if stamps: e(f"  s_add_u32 s{sI}, s{sI}, 1")
    e(f"  s_add_u32 s{sBC}, s{sBC}, 3")
    e(f"  s_min_u32 s{sBC}, s{sBC}, {N[-1]}")
    e(f"  s_cmp_lt_u32 s{sQ}, {TOTAL}")
    e(f"  s_cbranch_scc1 L_loop")
    if stamps:
        stamp(6)
        e(f"  s_waitcnt vmcnt(0)")
        stamp(7)
        e(f"  v_writelane_b32 v11, s{sCls}, 58")
        e(f"  v_writelane_b32 v11, s{sI}, 1")
        e(f"  s_mul_i32 s{sT}, s2, {W}")
        e(f"  s_add_u32 s{sT}, s{sT}, s{sWave}")
        e(f"  s_lshl_b32 s{sT}, s{sT}, 8")
        e(f"  v_lshlrev_b32 v{TMP}, 2, v0")
        e(f"  v_add_u32 v{TMP}, s{sT}, v{TMP}")
        e(f"  global_store_dword v{TMP}, v11, s[52:53]")
    if diag is not None:
        e(f"  s_waitcnt vmcnt(0)")
        e(f"  s_memrealtime s[74:75]")
        e(f"  s_waitcnt lgkmcnt(0)")
        e(f"  s_cmp_lg_u32 s{sWave}, {7 if diag < 8 else 0}")
        e(f"  s_cbranch_scc1 L_dg1")
        e(f"  v_mov_b32 v{R}, s70")
        e(f"  v_mov_b32 v{R+1}, s72")
        e(f"  v_mov_b32 v{R+2}, s74")
        e(f"  v_mov_b32 v{R+3}, s{sCls if diag < 8 else (78 if diag == 9 else 79)}")
        e(f"  s_lshl_b32 s{sT}, s2, 4")
        e(f"  v_mov_b32 v{TMP}, s{sT}")
        e(f"  global_store_dwordx4 v{TMP}, v[{R}:{R+3}], s[52:53] sc0 sc1")
        e(f"  s_endpgm")
        e("L_dg1:")
        if diag >= 8: e(f"  s_xor_b32 s{sWave}, s{sWave}, 7")
        e(f"  s_or_b32 s{sT}, s{sWave}, s2")
        e(f"  s_cmp_lg_u32 s{sT}, 0")
        e(f"  s_cbranch_scc1 L_end")
        e("L_dg2:")
        e(f"  s_memrealtime s[74:75]")
        e(f"  s_waitcnt lgkmcnt(0)")
        e(f"  s_sub_u32 s{sT}, s74, s70")
        e(f"  s_cmp_lt_u32 s{sT}, 4000")
        e(f"  s_cbranch_scc1 L_dg2")
        for k in range(4):
            e(f"  global_load_dwordx4 v[{ACC+4*k}:{ACC+4*k+3}], v{vD0}, s[52:53] offset:{k*1024} sc0 sc1")
        e(f"  v_lshlrev_b32 v{TMP}, 2, v0")
        e(f"  global_load_dword v{TMP+1}, v{TMP}, s[{sDbg}:{sDbg+1}] sc0 sc1")
        e(f"  s_waitcnt vmcnt(0)")
        e(f"  s_sub_u32 s{sT}, s70, 1000")
        for k in range(4):
            for j in range(3):
                e(f"  v_subrev_u32 v{ACC+4*k+j}, s{sT}, v{ACC+4*k+j}")
            if diag < 8: e(f"  v_sub_u32 v{ACC+4*k+3}, v{ACC+4*k+1}, v{ACC+4*k}")
            elif diag == 8:
                e(f"  v_cmp_gt_u32 vcc, 16, v{ACC+4*k+3}")
                e(f"  s_nop 1")
                e(f"  v_cndmask_b32 v{ACC+4*k+3}, 0, 5, vcc")
            elif diag == 11:
                e(f"  v_sub_u32 v{ACC+4*k+3}, v{ACC+4*k+1}, v{ACC+4*k}")
        def red(op, j, dst):
            e(f"  v_{op}_u32 v{R}, v{ACC+j}, v{ACC+4+j}")
            e(f"  v_{op}_u32 v{R}, v{R}, v{ACC+8+j}")
            e(f"  v_{op}_u32 v{R}, v{R}, v{ACC+12+j}")
            e(f"  s_nop 1")
            e(f"  v_readlane_b32 s{dst}, v{R}, 0")
            for l in range(1, 64):
                e(f"  v_readlane_b32 s{sU}, v{R}, {l}")
                sop = {"min":"s_min_u32","max":"s_max_u32","add":"s_add_u32"}[op]
                e(f"  {sop} s{dst}, s{dst}, s{sU}")
        if diag == 0:
            e(f"  s_mov_b32 s76, 0")
        elif diag == 1:
            red("max", 2, 76); red("min", 0, 77); e("  s_sub_u32 s76, s76, s77")
        elif diag == 2:
            red("max", 0, 76); red("min", 0, 77); e("  s_sub_u32 s76, s76, s77")
        elif diag == 3:
            e(f"  v_lshrrev_b32 v{TMP}, 8, v{TMP+1}")
            e(f"  v_xor_b32 v{TMP}, v{TMP}, v{TMP+1}")
            e(f"  v_and_b32 v{TMP+1}, 1, v{TMP}")
            e(f"  v_cmp_eq_u32 vcc, 0, v{TMP+1}")
            e(f"  s_nop 4")
            e(f"  s_bcnt1_i32_b64 s76, vcc")
            e(f"  v_and_b32 v{TMP+1}, 0x10000, v{TMP}")
            e(f"  v_cmp_eq_u32 vcc, 0, v{TMP+1}")
            e(f"  s_nop 4")
            e(f"  s_bcnt1_i32_b64 s77, vcc")
            e(f"  s_add_u32 s76, s76, s77")
            e(f"  s_mul_i32 s76, s76, 10")
        elif diag == 4:
            red("add", 3, 76); e("  s_lshr_b32 s76, s76, 8")
        elif diag == 5:
            red("min", 0, 77); e("  s_sub_u32 s76, 1000, s77")
        elif diag == 6:
            red("add", 2, 76); e("  s_lshr_b32 s76, s76, 8"); red("min", 0, 77); e("  s_sub_u32 s76, s76, s77")
        elif diag == 7:
            red("add", 0, 76); e("  s_lshr_b32 s76, s76, 8"); red("min", 0, 77); e("  s_sub_u32 s76, s76, s77")
        elif diag == 8: red("add", 3, 76)
        elif diag in (9, 10, 11): red("add", 3, 76); e("  s_lshr_b32 s76, s76, 8")
        e(f"  s_min_u32 s76, s76, 5000")
        e(f"  s_add_u32 s76, s76, 4500")
        e("L_dg3:")
        e(f"  s_memrealtime s[74:75]")
        e(f"  s_waitcnt lgkmcnt(0)")
        e(f"  s_sub_u32 s{sT}, s74, s70")
        e(f"  s_cmp_lt_u32 s{sT}, s76")
        e(f"  s_cbranch_scc1 L_dg3")
    e("L_end:")
    e("  s_endpgm")
    e("L_wait:")
    for n in range(N[-1]-3, 0, -3):
        e(f"  s_waitcnt vmcnt({n})")
        e(f"  s_cmp_eq_u32 s{sT}, {n}")
        e(f"  s_cbranch_scc1 L_body")
    e(f"  s_waitcnt vmcnt(0)")
    e(f"  s_branch L_body")
    e("L_nomore:")
    e(f"  s_mov_b32 s{sQ+D}, {TOTAL}")
    e(f"  s_add_u32 s{sND}, s{sND}, 3")
    e(f"  s_branch L_issued")
    e("L_poll:")
    e(f"  ds_read_b32 v{TMP}, v{vCTL} offset:4")
    e(f"  s_waitcnt lgkmcnt(0)")
    e(f"  v_readfirstlane_b32 s{sCls}, v{TMP}")
    e(f"  s_cmp_eq_u32 s{sCls}, 2")
    e(f"  s_cbranch_scc1 L_poll")
    e(f"  s_branch L_polled")
    e('.section .rodata,"a"')
    e(".p2align 6")
    e(f".amdhsa_kernel {NAME}")
    e(f"  .amdhsa_next_free_vgpr {NV}")
    e(f"  .amdhsa_next_free_sgpr 84")
    e(f"  .amdhsa_accum_offset {(NV+3)//4*4}")
    e("  .amdhsa_group_segment_fixed_size 0")
    e("  .amdhsa_kernarg_size 48")
    e("  .amdhsa_user_sgpr_count 2")
    e("  .amdhsa_user_sgpr_kernarg_segment_ptr 1")
    e("  .amdhsa_system_sgpr_workgroup_id_x 1")
    e("  .amdhsa_float_denorm_mode_32 3")
    e(".end_amdhsa_kernel")
    return "\n".join(o) + "\n"

if __name__ == "__main__":
    ap = argparse.ArgumentParser()
    ap.add_argument("-o", required=True)
    ap.add_argument("--G", type=int, default=16)
    ap.add_argument("--D", type=int, default=2)
    ap.add_argument("--early", action="store_true")
    ap.add_argument("--static", action="store_true")
    ap.add_argument("--thr", type=int, default=16)
    ap.add_argument("--ldf", default="nt")
    ap.add_argument("--stf", default="sc0 sc1")
    ap.add_argument("--force", type=int, default=None)
    ap.add_argument("--stamps", action="store_true")
    ap.add_argument("--diag", type=int, default=None)
    a = ap.parse_args()
    open(a.o, "w").write(gen(a.G, a.D, not a.early, not a.static, a.thr, a.ldf, a.stf, a.force, a.stamps, diag=a.diag))
```

```python
import sys, argparse
from gen1 import HEADER, NAME, TOTAL, TILE

def gen(G=16, D=2, late=True, dyn=True, thr=16, ldf="nt", stf="sc0 sc1", force=None, stamps=False, lds_min=90000, noloc=False, diag=None, pspan=None, pf="nt"):
    if pspan is None: pspan = D + 1
    W = 8; NWG = 256; T = 8
    SPAN = 16*TILE
    STEP = G*SPAN
    WTA = 0
    DWA = 18432
    OUTA = 20480
    RING = OUTA + W*TILE
    CTL = RING + W*D*TILE
    lds = max(CTL + 64, lds_min)
    assert lds <= 163840
    o = []
    e = o.append
    e(HEADER + f"; @launch grid=({NWG},1,1) block=({W*64},1,1) lds={lds}")
    e('.amdgcn_target "amdgcn-amd-amdhsa--gfx950"')
    e(".text")
    e(f".globl {NAME}")
    e(".p2align 8")
    e(f".type {NAME},@function")
    e(f"{NAME}:")
    vD0, vD1, vD2, vBR, vBB, vOW, vOR0, vOR1, vOR2, vT = 1,2,3,4,5,6,7,8,9,10
    B = 12; ACC = 24; O = 48; R = 60; DW = 72; TMP = 96; WT = 100; vCTL = 172; vONE = 173; vN = 174
    NV = 175
    sWave, sBase, sI, sSlot, sMask, sRingLo, sRingHi, sT, sU, sCls, sM, sSh, sN, sSpan = 28,29,30,31,32,33,34,35,36,37,38,39,40,41
    sP = 42; sBC = 43; sND = 46
    sDbg = 44
    sQ = 64
    def stamp(j, dynr=None):
        if not stamps: return
        e(f"  s_memrealtime s[48:49]")
        if dynr is not None:
            e(f"  s_add_u32 s50, s{dynr}, {j}")
            e(f"  s_mov_b32 s51, m0")
            e(f"  s_mov_b32 m0, s50")
        e(f"  s_waitcnt lgkmcnt(0)")
        if dynr is not None:
            e(f"  v_writelane_b32 v11, s48, m0")
            e(f"  s_mov_b32 m0, s51")
        else:
            e(f"  v_writelane_b32 v11, s48, {j}")
    def tileoff(dst, sn, scls):
        e(f"  s_lshr_b32 s{sSpan}, s{sn}, 3")
        e(f"  s_mul_i32 s{sSpan}, s{sSpan}, {STEP}")
        e(f"  s_add_u32 s{sSpan}, s{sSpan}, s{sBase}")
        e(f"  s_lshl_b32 s{sT}, s{sn}, 2")
        e(f"  s_lshr_b32 s{sT}, 0xcb756210, s{sT}")
        e(f"  s_add_u32 s{sU}, s{sSpan}, {SPAN//2}")
        e(f"  s_lshr_b32 s{sU}, s{sU}, 21")
        e(f"  s_xor_b32 s{sU}, s{sU}, s{scls}")
        e(f"  s_lshl_b32 s{sU}, s{sU}, 3")
        e(f"  s_xor_b32 s{sT}, s{sT}, s{sU}")
        e(f"  s_and_b32 s{sT}, s{sT}, 15")
        e(f"  s_mul_i32 s{sT}, s{sT}, {TILE}")
        e(f"  s_add_u32 s{dst}, s{sT}, s{sSpan}")
    def loads(so):
        for q, vd in enumerate((vD0, vD1, vD2)):
            e(f"  buffer_load_dwordx4 v{vd}, s[12:15], s{so} offen offset:{q*1024} {ldf} lds")
    e(f"  s_cmp_ge_u32 s2, {NWG}")
    e(f"  s_cbranch_scc1 L_end")
    if stamps: e("  v_mov_b32 v11, 0")
    stamp(0)
    if diag is not None:
        e(f"  s_memrealtime s[70:71]")
        e(f"  s_load_dwordx2 s[52:53], s[0:1], 40")
    e(f"  s_load_dwordx8 s[4:11], s[0:1], 0")
    e(f"  s_load_dwordx2 s[{sDbg}:{sDbg+1}], s[0:1], 32")
    if stamps: e(f"  s_load_dwordx2 s[52:53], s[0:1], 40")
    e(f"  v_lshrrev_b32 v{vT}, 6, v0")
    e(f"  v_and_b32 v0, 63, v0                 ; lane")
    e(f"  v_readfirstlane_b32 s{sWave}, v{vT}")
    e(f"  v_lshlrev_b32 v{vD0}, 4, v0          ; l*16")
    e(f"  v_xor_b32 v{vD2}, 32, v{vD0}         ; (l^2)*16")
    e(f"  v_and_b32 v{vT}, 32, v0")
    e(f"  v_xor_b32 v{vD1}, v{vT}, v{vD0}      ; l>=32 ? (l^2)*16 : l*16")
    e(f"  s_lshr_b32 s{sT}, s2, 3")
    e(f"  s_lshl_b32 s{sT}, s{sT}, 2")
    e(f"  s_and_b32 s{sP}, s2, 3")
    e(f"  s_or_b32 s{sP}, s{sP}, s{sT}")
    e(f"  s_bfe_u32 s{sM}, s2, 0x10002")
    e(f"  s_and_b32 s{sBase}, s{sP}, {G-1}")
    e(f"  s_andn2_b32 s{sT}, s{sP}, {G-1}")
    e(f"  s_lshl_b32 s{sT}, s{sT}, 3            ; group*G*T")
    e(f"  s_add_u32 s{sBase}, s{sBase}, s{sT}")
    e(f"  s_mul_i32 s{sBase}, s{sBase}, {SPAN}")
    e(f"  s_lshr_b32 s{sCls}, s{sWave}, 2")
    e(f"  s_xor_b32 s{sCls}, s{sCls}, s{sM}")
    tileoff(sQ, sWave, sCls)
    for k in range(1, D):
        e(f"  s_add_u32 s{sQ+k}, s{sQ+k-1}, {STEP}")
    e(f"  s_mul_i32 s{sRingLo}, s{sWave}, {D*TILE}")
    e(f"  s_add_u32 s{sRingLo}, s{sRingLo}, {RING}")
    e(f"  s_mov_b32 s14, {TOTAL}")
    e(f"  s_mov_b32 s15, 0x20000")
    e(f"  v_mov_b32 v{vCTL}, {CTL}")
    e(f"  s_cmp_lg_u32 s{sWave}, 0")
    e(f"  s_cbranch_scc1 L_notw0")
    e(f"  v_mov_b32 v{TMP}, {8*D}")
    e(f"  v_mov_b32 v{TMP+1}, 2")
    e(f"  ds_write_b64 v{vCTL}, v[{TMP}:{TMP+1}]")
    e(f"  s_add_u32 s60, s{sBase}, {pspan*STEP}")
    e(f"  s_lshl_b32 s61, s{sM}, 10")
    e(f"  s_add_u32 s60, s60, s61")
    e(f"  s_lshl_b32 s61, s{sP}, 13")
    e(f"  s_and_b32 s61, s61, 8192")
    e(f"  s_add_u32 s60, s60, s61")
    e(f"  v_mov_b32 v{TMP+2}, s60")
    e(f"  v_xor_b32 v{TMP+3}, 8192, v{TMP+2}")
    e(f"  s_and_b32 s{sSh}, s{sP}, 1")
    e(f"  s_lshl_b32 s{sSh}, s{sSh}, 1")
    e(f"  s_or_b32 s{sSh}, s{sSh}, s{sM}")
    e(f"  s_lshl_b32 s{sSh}, s{sSh}, 3")
    e(f"  s_lshr_b32 s62, s{sP}, 1")
    e(f"  s_lshl_b32 s62, s62, 2")
    e(f"  s_mov_b64 exec, 1")
    e(f"  s_branch L_probe")
    e(".p2align 6")
    e("L_probe:")
    e(f"  s_waitcnt lgkmcnt(0)")
    e(f"  s_barrier")
    e(f"  global_load_dword v{TMP}, v{TMP+2}, s[4:5] {pf}")
    e(f"  global_load_dword v{TMP+1}, v{TMP+3}, s[4:5] {pf}")
    if diag is not None and diag >= 8: e(f"  s_memtime s[78:79]")
    e(f"  s_waitcnt vmcnt(1)")
    e(f"  s_memtime s[54:55]")
    e(f"  s_waitcnt vmcnt(0)")
    e(f"  s_memtime s[56:57]")
    e(f"  s_mov_b64 exec, -1")
    e(f"  s_lshr_b32 s61, s60, 8")
    e(f"  s_xor_b32 s60, s60, s61")
    e(f"  s_waitcnt lgkmcnt(0)")
    e(f"  s_sub_u32 s61, s56, s54")
    if diag is not None and diag >= 8:
        e(f"  s_sub_u32 s78, s54, s78")
        e(f"  s_mov_b32 s79, s61")
    if stamps:
        e(f"  v_writelane_b32 v11, s61, 56")
        e(f"  s_lshr_b32 s63, s60, 13")
        e(f"  v_writelane_b32 v11, s63, 63")
    if force is None:
        e(f"  s_cmp_lt_u32 s61, {thr}")
        e(f"  s_cselect_b32 s61, 8192, 0")
        e(f"  s_xor_b32 s61, s61, s60")
        e(f"  s_bfe_u32 s61, s61, 0x1000d")
    else:
        e(f"  s_getreg_b32 s61, hwreg(HW_REG_XCC_ID)")
        e(f"  s_bfe_u32 s61, s61, 0x10002")
        e(f"  s_xor_b32 s61, s61, {force}")
    if stamps: e(f"  v_writelane_b32 v11, s61, 57")
    e(f"  s_or_b32 s63, s61, 2")
    e(f"  s_lshl_b32 s63, s63, s{sSh}")
    e(f"  s_atomic_or s63, s[{sDbg}:{sDbg+1}], s62 glc")
    e(f"  s_mov_b32 s12, s4")
    e(f"  s_mov_b32 s13, s5")
    e(f"  s_branch L_xload")
    e("L_notw0:")
    e(f"  s_mov_b32 s22, 18432")
    e(f"  s_mov_b32 s23, 0x20000")
    e(f"  s_mul_i32 s60, s{sWave}, 5120")
    e(f"  s_sub_u32 s60, s60, 5120")
    e(f"  s_mov_b32 m0, s60")
    e(f"  s_waitcnt lgkmcnt(0)")
    e(f"  s_barrier")
    e(f"  s_mov_b32 s20, s8")
    e(f"  s_mov_b32 s21, s9")
    e(f"  s_mov_b32 s12, s4")
    e(f"  s_mov_b32 s13, s5")
    e(f"  s_cmp_gt_u32 s{sWave}, 4")
    e(f"  s_cbranch_scc1 L_xload")
    for k in range(3):
        e(f"  buffer_load_dwordx4 v{vD0}, s[20:23], s60 offen offset:{k*1024} lds")
    e(f"  s_cmp_eq_u32 s{sWave}, 4")
    e(f"  s_cbranch_scc1 L_dw")
    e(f"  buffer_load_dwordx4 v{vD0}, s[20:23], s60 offen offset:3072 lds")
    e(f"  s_add_u32 s60, s60, 4096")
    e(f"  s_mov_b32 m0, s60")
    e(f"  s_nop 0")
    e(f"  buffer_load_dwordx4 v{vD0}, s[20:23], s60 offen lds")
    e(f"  s_branch L_xload")
    e("L_dw:")
    e(f"  s_mov_b32 m0, {DWA}")
    e(f"  s_mov_b32 s20, s6")
    e(f"  s_mov_b32 s21, s7")
    e(f"  s_mov_b32 s22, 192")
    e(f"  buffer_load_dwordx4 v{vD0}, s[20:23], 0 offen lds")
    e("L_xload:")
    e(f"  s_mov_b32 s{sSlot}, s{sRingLo}")
    for k in range(D):
        e(f"  s_mov_b32 m0, s{sSlot}")
        e(f"  s_add_u32 s{sSlot}, s{sSlot}, {TILE}")
        loads(sQ+k)
    stamp(1) if False else None
    e(f"  s_mov_b32 s{sRingHi}, s{sSlot}")
    e(f"  s_mov_b32 s{sSlot}, s{sRingLo}")
    e(f"  s_mov_b32 s16, s10")
    e(f"  s_mov_b32 s17, s11")
    e(f"  s_mov_b32 s18, {TOTAL}")
    e(f"  s_mov_b32 s19, 0x20000")
    e(f"  s_mov_b32 s{sMask}, 0xffff0000")
    e(f"  s_mov_b32 s{sI}, 0")
    e(f"  s_mov_b32 s{sCls}, 2")
    if not dyn:
        e(f"  s_add_u32 s{sN}, s{sWave}, {8*(D-1)}")
    t0, t1, t2 = TMP, TMP+1, TMP+2
    e(f"  s_mul_i32 s{sT}, s{sWave}, {TILE}")
    e(f"  s_add_u32 s{sT}, s{sT}, {OUTA}")
    e(f"  v_mov_b32 v{vONE}, 1")
    e(f"  v_and_b32 v{vT}, 48, v0              ; g*16")
    e(f"  v_and_b32 v{t0}, 15, v0              ; j")
    e(f"  v_mul_u32_u24 v{t1}, 192, v{t0}      ; j*192")
    e(f"  v_and_b32 v{t2}, 8, v0")
    e(f"  v_lshlrev_b32 v{t2}, 2, v{t2}        ; f(j)*16 = (j&8)<<2")
    e(f"  v_xor_b32 v{t2}, v{t2}, v{vT}        ; (g^f)*16")
    e(f"  v_add_u32 v{vBB}, v{t1}, v{t2}")
    e(f"  v_and_b32 v{t2}, 6, v0")
    e(f"  v_lshlrev_b32 v{t2}, 3, v{t2}        ; fo(j)*16 = ((j>>1)&3)<<4")
    e(f"  v_xor_b32 v{t2}, v{t2}, v{vT}")
    e(f"  v_add3_u32 v{vOW}, v{t1}, v{t2}, s{sT}")
    for q, vr in enumerate((vOR0, vOR1, vOR2)):
        e(f"  v_add_u32 v{t0}, {q*64}, v0          ; P")
        e(f"  v_mul_u32_u24 v{t1}, 171, v{t0}")
        e(f"  v_bfe_u32 v{t1}, v{t1}, 12, 2        ; ((P/12)>>1)&3")
        e(f"  v_xor_b32 v{t0}, v{t0}, v{t1}")
        e(f"  v_lshl_add_u32 v{vr}, v{t0}, 4, s{sT}")
    e(f"  v_lshrrev_b32 v{t0}, 1, v{vT}        ; 8g")
    e(f"  v_bfe_u32 v{t1}, v0, 2, 2            ; r'")
    e(f"  v_add_u32 v{t0}, v{t0}, v{t1}")
    e(f"  v_mul_u32_u24 v{t0}, 192, v{t0}")
    e(f"  v_and_b32 v{t1}, 3, v0")
    e(f"  v_lshl_add_u32 v{t0}, v{t1}, 4, v{t0}")
    e(f"  s_waitcnt vmcnt({3*D})")
    if stamps:
        e(f"  s_cmp_eq_u32 s{sWave}, 0")
        e(f"  s_cbranch_scc1 L_st2")
        stamp(2)
        e("L_st2:")
    e(f"  s_barrier                             ; barrier 1")
    for s in range(3):
        e(f"  ds_read_b128 v[{R+4*s}:{R+4*s+3}], v{vT} offset:{DWA+s*64}")
    for s in range(3):
        for n in range(6):
            m, b = n >> 1, n & 1
            for u in range(2):
                r = WT + (n*3+s)*4 + 2*u
                e(f"  ds_read_b64_tr_b16 v[{r}:{r+1}], v{t0} offset:{WTA + s*6144 + u*768 + m*64 + b*8}")
    e(f"  s_waitcnt lgkmcnt(0)")
    for w in range(12):
        e(f"  v_lshlrev_b32 v{DW+2*w}, 16, v{R+w}")
        e(f"  v_and_b32 v{DW+2*w+1}, s{sMask}, v{R+w}")
    e(f"  s_cmp_lg_u32 s{sWave}, 0")
    e(f"  s_cbranch_scc1 L_nopub")
    e(f"  s_xor_b32 s{sSh}, s{sSh}, 8")
    e(f"  s_lshr_b32 s63, s63, s{sSh}")
    e(f"  s_xor_b32 s62, s63, 1")
    e(f"  s_and_b32 s62, s62, 1")
    e(f"  s_bitcmp1_b32 s63, 1")
    e(f"  s_cselect_b32 s61, s62, s61")
    e(f"  v_mov_b32 v{TMP}, s61")
    e(f"  ds_write_b32 v{vCTL}, v{TMP} offset:4")
    e("L_nopub:")
    if diag is not None:
        e(f"  s_memrealtime s[72:73]")
        e(f"  s_waitcnt lgkmcnt(0)")
    stamp(3)
    if stamps:
        e(f"  s_getreg_b32 s56, hwreg(HW_REG_XCC_ID)")
        e(f"  s_getreg_b32 s57, hwreg(HW_REG_HW_ID)")
        e(f"  v_writelane_b32 v11, s56, 4")
        e(f"  v_writelane_b32 v11, s57, 5")
    seq = [("L", k) for k in range(D)]
    N = []
    for i in range(D+3):
        idx = seq.index(("L", i))
        N.append(3*(len(seq)-1-idx))
        if late:
            seq.append(("S", i)); seq.append(("L", i+D))
        else:
            seq.append(("L", i+D)); seq.append(("S", i))
    while len(N) > 1 and N[-1] == N[-2]: N.pop()
    def grab_issue():
        if dyn:
            e(f"  v_readfirstlane_b32 s{sN}, v{vN}")
        else:
            e(f"  s_add_u32 s{sN}, s{sN}, 8")
        e(f"  s_cmp_eq_u32 s{sCls}, 2")
        e(f"  s_cbranch_scc1 L_poll")
        e("L_polled:")
        tileoff(sQ+D, sN, sCls)
        e(f"  s_cmp_ge_u32 s{sN}, {8*T}")
        e(f"  s_cbranch_scc1 L_nomore")
        loads(sQ+D)
        e("L_issued:")
    e(f"  s_mov_b32 s{sBC}, {N[0]}")
    e(f"  s_mov_b32 s{sND}, 0")
    e("L_loop:")
    e(f"  v_add_u32 v{vBR}, s{sSlot}, v{vBB}")
    if dyn:
        e(f"  s_mov_b64 exec, 1")
        e(f"  ds_add_rtn_u32 v{vN}, v{vCTL}, v{vONE}")
        e(f"  s_mov_b64 exec, -1")
    for a, b in zip(N, N[1:]): assert b == a + 3
    e(f"  s_sub_u32 s{sT}, s{sBC}, s{sND}")
    e(f"  s_cmp_lg_u32 s{sT}, {N[-1]}")
    e(f"  s_cbranch_scc1 L_wait")
    e(f"  s_waitcnt vmcnt({N[-1]})")
    e("L_body:")
    stamp(8, sI)
    for s in range(3):
        e(f"  ds_read_b128 v[{B+4*s}:{B+4*s+3}], v{vBR} offset:{s*64}")
    e(f"  s_mov_b32 m0, s{sSlot}")
    e(f"  s_add_u32 s{sSlot}, s{sSlot}, {TILE}")
    e(f"  s_cmp_eq_u32 s{sSlot}, s{sRingHi}")
    e(f"  s_cselect_b32 s{sSlot}, s{sRingLo}, s{sSlot}")
    if late:
        e(f"  s_waitcnt lgkmcnt(2)")
    else:
        e(f"  s_waitcnt lgkmcnt(0)")
        grab_issue()
    def scale(s):
        ops = []
        for w in range(4):
            x = B+4*s+w
            d = DW + 2*(4*s+w)
            ta = TMP + 2*(w & 1)
            ops.append(f"  v_lshlrev_b32 v{ta}, 16, v{x}")
            ops.append(f"  v_and_b32 v{ta+1}, s{sMask}, v{x}")
            ops.append(f"  v_mul_f32 v{ta}, v{ta}, v{d}")
            ops.append(f"  v_mul_f32 v{ta+1}, v{ta+1}, v{d+1}")
            ops.append(f"  v_cvt_pk_bf16_f32 v{x}, v{ta}, v{ta+1}")
        return ops
    def mfma(s, n):
        a = WT + (n*3+s)*4
        c = "0" if s == 0 else f"v[{ACC+4*n}:{ACC+4*n+3}]"
        return f"  v_mfma_f32_16x16x32_bf16 v[{ACC+4*n}:{ACC+4*n+3}], v[{a}:{a+3}], v[{B+4*s}:{B+4*s+3}], {c}"
    for x in scale(0): e(x)
    if late: e(f"  s_waitcnt lgkmcnt(0)")
    for s in range(3):
        nxt = scale(s+1) if s < 2 else []
        pre = nxt[:2]; nxt = nxt[2:]
        if pre:
            for x in pre: e(x)
        else:
            e("  s_nop 1")
        per = -(-len(nxt)//6)
        for n in range(6):
            e(mfma(s, n))
            for x in nxt[n*per:(n+1)*per]: e(x)
    e("  s_nop 2")
    for m in range(3):
        for b in range(2):
            n = 2*m+b
            e(f"  v_cvt_pk_bf16_f32 v{O+4*m+2*b}, v{ACC+4*n}, v{ACC+4*n+1}")
            e(f"  v_cvt_pk_bf16_f32 v{O+4*m+2*b+1}, v{ACC+4*n+2}, v{ACC+4*n+3}")
        e(f"  ds_write_b128 v{vOW}, v[{O+4*m}:{O+4*m+3}] offset:{m*64}")
    e(f"  s_waitcnt lgkmcnt(0)")
    for q, vr in enumerate((vOR0, vOR1, vOR2)):
        e(f"  ds_read_b128 v[{R+4*q}:{R+4*q+3}], v{vr}")
    for q in range(3):
        e(f"  s_waitcnt lgkmcnt({2-q})")
        e(f"  buffer_store_dwordx4 v[{R+4*q}:{R+4*q+3}], v{vD0}, s[16:19], s{sQ} offen offset:{q*1024} {stf}")
    stamp(32, sI)
    if late: grab_issue()
    for k in range(D):
        e(f"  s_mov_b32 s{sQ+k}, s{sQ+k+1}")
    if stamps: e(f"  s_add_u32 s{sI}, s{sI}, 1")
    e(f"  s_add_u32 s{sBC}, s{sBC}, 3")
    e(f"  s_min_u32 s{sBC}, s{sBC}, {N[-1]}")
    e(f"  s_cmp_lt_u32 s{sQ}, {TOTAL}")
    e(f"  s_cbranch_scc1 L_loop")
    if stamps:
        stamp(6)
        e(f"  s_waitcnt vmcnt(0)")
        stamp(7)
        e(f"  v_writelane_b32 v11, s{sCls}, 58")
        e(f"  v_writelane_b32 v11, s{sI}, 1")
        e(f"  s_mul_i32 s{sT}, s2, {W}")
        e(f"  s_add_u32 s{sT}, s{sT}, s{sWave}")
        e(f"  s_lshl_b32 s{sT}, s{sT}, 8")
        e(f"  v_lshlrev_b32 v{TMP}, 2, v0")
        e(f"  v_add_u32 v{TMP}, s{sT}, v{TMP}")
        e(f"  global_store_dword v{TMP}, v11, s[52:53]")
    if diag is not None:
        e(f"  s_waitcnt vmcnt(0)")
        e(f"  s_memrealtime s[74:75]")
        e(f"  s_waitcnt lgkmcnt(0)")
        e(f"  s_cmp_lg_u32 s{sWave}, {7 if diag < 8 else 0}")
        e(f"  s_cbranch_scc1 L_dg1")
        e(f"  v_mov_b32 v{R}, s70")
        e(f"  v_mov_b32 v{R+1}, s72")
        e(f"  v_mov_b32 v{R+2}, s74")
        e(f"  v_mov_b32 v{R+3}, s{sCls if diag < 8 else (78 if diag in (9, 13, 14, 15, 16) else 79)}")
        e(f"  s_lshl_b32 s{sT}, s2, 4")
        e(f"  v_mov_b32 v{TMP}, s{sT}")
        e(f"  global_store_dwordx4 v{TMP}, v[{R}:{R+3}], s[52:53] sc0 sc1")
        e(f"  s_endpgm")
        e("L_dg1:")
        if diag >= 8: e(f"  s_xor_b32 s{sWave}, s{sWave}, 7")
        e(f"  s_or_b32 s{sT}, s{sWave}, s2")
        e(f"  s_cmp_lg_u32 s{sT}, 0")
        e(f"  s_cbranch_scc1 L_end")
        e("L_dg2:")
        e(f"  s_memrealtime s[74:75]")
        e(f"  s_waitcnt lgkmcnt(0)")
        e(f"  s_sub_u32 s{sT}, s74, s70")
        e(f"  s_cmp_lt_u32 s{sT}, 4000")
        e(f"  s_cbranch_scc1 L_dg2")
        for k in range(4):
            e(f"  global_load_dwordx4 v[{ACC+4*k}:{ACC+4*k+3}], v{vD0}, s[52:53] offset:{k*1024} sc0 sc1")
        e(f"  v_lshlrev_b32 v{TMP}, 2, v0")
        e(f"  global_load_dword v{TMP+1}, v{TMP}, s[{sDbg}:{sDbg+1}] sc0 sc1")
        e(f"  s_waitcnt vmcnt(0)")
        e(f"  s_sub_u32 s{sT}, s70, 1000")
        for k in range(4):
            for j in range(3):
                e(f"  v_subrev_u32 v{ACC+4*k+j}, s{sT}, v{ACC+4*k+j}")
            if diag < 8: e(f"  v_sub_u32 v{ACC+4*k+3}, v{ACC+4*k+1}, v{ACC+4*k}")
            elif diag == 8:
                e(f"  v_cmp_gt_u32 vcc, 16, v{ACC+4*k+3}")
                e(f"  s_nop 1")
                e(f"  v_cndmask_b32 v{ACC+4*k+3}, 0, 5, vcc")
            elif diag == 12:
                e(f"  v_cmp_gt_u32 vcc, 16, v{ACC+4*k+3}")
                e(f"  s_nop 1")
                e(f"  v_cndmask_b32 v{ACC+4*k+3}, 5, 0, vcc")
            elif diag in (13, 14, 15, 16):
                lim = {13: 500, 14: 800, 15: 1000, 16: 1300}[diag]
                e(f"  v_cmp_gt_u32 vcc, {lim}, v{ACC+4*k+3}")
                e(f"  s_nop 1")
                e(f"  v_cndmask_b32 v{ACC+4*k+3}, 0, 5, vcc")
            elif diag == 11:
                e(f"  v_sub_u32 v{ACC+4*k+3}, v{ACC+4*k+1}, v{ACC+4*k}")
        def red(op, j, dst):
            e(f"  v_{op}_u32 v{R}, v{ACC+j}, v{ACC+4+j}")
            e(f"  v_{op}_u32 v{R}, v{R}, v{ACC+8+j}")
            e(f"  v_{op}_u32 v{R}, v{R}, v{ACC+12+j}")
            e(f"  s_nop 1")
            e(f"  v_readlane_b32 s{dst}, v{R}, 0")
            for l in range(1, 64):
                e(f"  v_readlane_b32 s{sU}, v{R}, {l}")
                sop = {"min":"s_min_u32","max":"s_max_u32","add":"s_add_u32"}[op]
                e(f"  {sop} s{dst}, s{dst}, s{sU}")
        if diag == 0:
            e(f"  s_mov_b32 s76, 0")
        elif diag == 1:
            red("max", 2, 76); red("min", 0, 77); e("  s_sub_u32 s76, s76, s77")
        elif diag == 2:
            red("max", 0, 76); red("min", 0, 77); e("  s_sub_u32 s76, s76, s77")
        elif diag == 3:
            e(f"  v_lshrrev_b32 v{TMP}, 8, v{TMP+1}")
            e(f"  v_xor_b32 v{TMP}, v{TMP}, v{TMP+1}")
            e(f"  v_and_b32 v{TMP+1}, 1, v{TMP}")
            e(f"  v_cmp_eq_u32 vcc, 0, v{TMP+1}")
            e(f"  s_nop 4")
            e(f"  s_bcnt1_i32_b64 s76, vcc")
            e(f"  v_and_b32 v{TMP+1}, 0x10000, v{TMP}")
            e(f"  v_cmp_eq_u32 vcc, 0, v{TMP+1}")
            e(f"  s_nop 4")
            e(f"  s_bcnt1_i32_b64 s77, vcc")
            e(f"  s_add_u32 s76, s76, s77")
            e(f"  s_mul_i32 s76, s76, 10")
        elif diag == 4:
            red("add", 3, 76); e("  s_lshr_b32 s76, s76, 8")
        elif diag == 5:
            red("min", 0, 77); e("  s_sub_u32 s76, 1000, s77")
        elif diag == 6:
            red("add", 2, 76); e("  s_lshr_b32 s76, s76, 8"); red("min", 0, 77); e("  s_sub_u32 s76, s76, s77")
        elif diag == 7:
            red("add", 0, 76); e("  s_lshr_b32 s76, s76, 8"); red("min", 0, 77); e("  s_sub_u32 s76, s76, s77")
        elif diag in (8, 12, 13, 14, 15, 16): red("add", 3, 76)
        elif diag in (9, 10, 11): red("add", 3, 76); e("  s_lshr_b32 s76, s76, 8")
        e(f"  s_min_u32 s76, s76, 5000")
        e(f"  s_add_u32 s76, s76, 4500")
        e("L_dg3:")
        e(f"  s_memrealtime s[74:75]")
        e(f"  s_waitcnt lgkmcnt(0)")
        e(f"  s_sub_u32 s{sT}, s74, s70")
        e(f"  s_cmp_lt_u32 s{sT}, s76")
        e(f"  s_cbranch_scc1 L_dg3")
    e("L_end:")
    e("  s_endpgm")
    e("L_wait:")
    for n in range(N[-1]-3, 0, -3):
        e(f"  s_waitcnt vmcnt({n})")
        e(f"  s_cmp_eq_u32 s{sT}, {n}")
        e(f"  s_cbranch_scc1 L_body")
    e(f"  s_waitcnt vmcnt(0)")
    e(f"  s_branch L_body")
    e("L_nomore:")
    e(f"  s_mov_b32 s{sQ+D}, {TOTAL}")
    e(f"  s_add_u32 s{sND}, s{sND}, 3")
    e(f"  s_branch L_issued")
    e("L_poll:")
    e(f"  ds_read_b32 v{TMP}, v{vCTL} offset:4")
    e(f"  s_waitcnt lgkmcnt(0)")
    e(f"  v_readfirstlane_b32 s{sCls}, v{TMP}")
    e(f"  s_cmp_eq_u32 s{sCls}, 2")
    e(f"  s_cbranch_scc1 L_poll")
    e(f"  s_branch L_polled")
    e('.section .rodata,"a"')
    e(".p2align 6")
    e(f".amdhsa_kernel {NAME}")
    e(f"  .amdhsa_next_free_vgpr {NV}")
    e(f"  .amdhsa_next_free_sgpr 84")
    e(f"  .amdhsa_accum_offset {(NV+3)//4*4}")
    e("  .amdhsa_group_segment_fixed_size 0")
    e("  .amdhsa_kernarg_size 48")
    e("  .amdhsa_user_sgpr_count 2")
    e("  .amdhsa_user_sgpr_kernarg_segment_ptr 1")
    e("  .amdhsa_system_sgpr_workgroup_id_x 1")
    e("  .amdhsa_float_denorm_mode_32 3")
    e(".end_amdhsa_kernel")
    return "\n".join(o) + "\n"

if __name__ == "__main__":
    ap = argparse.ArgumentParser()
    ap.add_argument("-o", required=True)
    ap.add_argument("--G", type=int, default=16)
    ap.add_argument("--D", type=int, default=2)
    ap.add_argument("--early", action="store_true")
    ap.add_argument("--static", action="store_true")
    ap.add_argument("--thr", type=int, default=16)
    ap.add_argument("--ldf", default="nt")
    ap.add_argument("--stf", default="sc0 sc1")
    ap.add_argument("--force", type=int, default=None)
    ap.add_argument("--stamps", action="store_true")
    ap.add_argument("--diag", type=int, default=None)
    a = ap.parse_args()
    open(a.o, "w").write(gen(a.G, a.D, not a.early, not a.static, a.thr, a.ldf, a.stf, a.force, a.stamps, diag=a.diag))
```

```python
import sys, argparse
from gen1 import HEADER, NAME, TOTAL, TILE

def gen(G=16, D=2, late=True, dyn=True, thr=16, ldf="nt", stf="sc0 sc1", force=None, stamps=False, lds_min=90000, noloc=False, diag=None, pspan=None, pf="nt", pop=None):
    if pspan is None: pspan = D + 1
    W = 8; NWG = 256; T = 8
    SPAN = 16*TILE
    STEP = G*SPAN
    WTA = 0
    DWA = 18432
    OUTA = 20480
    RING = OUTA + W*TILE
    CTL = RING + W*D*TILE
    lds = max(CTL + 64, lds_min)
    assert lds <= 163840
    o = []
    e = o.append
    e(HEADER + f"; @launch grid=({NWG},1,1) block=({W*64},1,1) lds={lds}")
    e('.amdgcn_target "amdgcn-amd-amdhsa--gfx950"')
    e(".text")
    e(f".globl {NAME}")
    e(".p2align 8")
    e(f".type {NAME},@function")
    e(f"{NAME}:")
    vD0, vD1, vD2, vBR, vBB, vOW, vOR0, vOR1, vOR2, vT = 1,2,3,4,5,6,7,8,9,10
    B = 12; ACC = 24; O = 48; R = 60; DW = 72; TMP = 96; WT = 100; vCTL = 172; vONE = 173; vN = 174
    NV = 175
    sWave, sBase, sI, sSlot, sMask, sRingLo, sRingHi, sT, sU, sCls, sM, sSh, sN, sSpan = 28,29,30,31,32,33,34,35,36,37,38,39,40,41
    sP = 42; sBC = 43; sND = 46
    sDbg = 44
    sQ = 64
    def stamp(j, dynr=None):
        if not stamps: return
        e(f"  s_memrealtime s[48:49]")
        if dynr is not None:
            e(f"  s_add_u32 s50, s{dynr}, {j}")
            e(f"  s_mov_b32 s51, m0")
            e(f"  s_mov_b32 m0, s50")
        e(f"  s_waitcnt lgkmcnt(0)")
        if dynr is not None:
            e(f"  v_writelane_b32 v11, s48, m0")
            e(f"  s_mov_b32 m0, s51")
        else:
            e(f"  v_writelane_b32 v11, s48, {j}")
    def tileoff(dst, sn, scls):
        e(f"  s_lshr_b32 s{sSpan}, s{sn}, 3")
        e(f"  s_mul_i32 s{sSpan}, s{sSpan}, {STEP}")
        e(f"  s_add_u32 s{sSpan}, s{sSpan}, s{sBase}")
        e(f"  s_lshl_b32 s{sT}, s{sn}, 2")
        e(f"  s_lshr_b32 s{sT}, 0xcb756210, s{sT}")
        e(f"  s_add_u32 s{sU}, s{sSpan}, {SPAN//2}")
        e(f"  s_lshr_b32 s{sU}, s{sU}, 21")
        e(f"  s_xor_b32 s{sU}, s{sU}, s{scls}")
        e(f"  s_lshl_b32 s{sU}, s{sU}, 3")
        e(f"  s_xor_b32 s{sT}, s{sT}, s{sU}")
        e(f"  s_and_b32 s{sT}, s{sT}, 15")
        e(f"  s_mul_i32 s{sT}, s{sT}, {TILE}")
        e(f"  s_add_u32 s{dst}, s{sT}, s{sSpan}")
    def loads(so):
        for q, vd in enumerate((vD0, vD1, vD2)):
            e(f"  buffer_load_dwordx4 v{vd}, s[12:15], s{so} offen offset:{q*1024} {ldf} lds")
    e(f"  s_cmp_ge_u32 s2, {NWG}")
    e(f"  s_cbranch_scc1 L_end")
    if stamps: e("  v_mov_b32 v11, 0")
    stamp(0)
    if diag is not None:
        e(f"  s_memrealtime s[70:71]")
        e(f"  s_load_dwordx2 s[52:53], s[0:1], 40")
    e(f"  s_load_dwordx8 s[4:11], s[0:1], 0")
    e(f"  s_load_dwordx2 s[{sDbg}:{sDbg+1}], s[0:1], 32")
    if stamps: e(f"  s_load_dwordx2 s[52:53], s[0:1], 40")
    e(f"  v_lshrrev_b32 v{vT}, 6, v0")
    e(f"  v_and_b32 v0, 63, v0                 ; lane")
    e(f"  v_readfirstlane_b32 s{sWave}, v{vT}")
    e(f"  v_lshlrev_b32 v{vD0}, 4, v0          ; l*16")
    e(f"  v_xor_b32 v{vD2}, 32, v{vD0}         ; (l^2)*16")
    e(f"  v_and_b32 v{vT}, 32, v0")
    e(f"  v_xor_b32 v{vD1}, v{vT}, v{vD0}      ; l>=32 ? (l^2)*16 : l*16")
    e(f"  s_lshr_b32 s{sT}, s2, 3")
    e(f"  s_lshl_b32 s{sT}, s{sT}, 2")
    e(f"  s_and_b32 s{sP}, s2, 3")
    e(f"  s_or_b32 s{sP}, s{sP}, s{sT}")
    e(f"  s_bfe_u32 s{sM}, s2, 0x10002")
    e(f"  s_and_b32 s{sBase}, s{sP}, {G-1}")
    e(f"  s_andn2_b32 s{sT}, s{sP}, {G-1}")
    e(f"  s_lshl_b32 s{sT}, s{sT}, 3            ; group*G*T")
    e(f"  s_add_u32 s{sBase}, s{sBase}, s{sT}")
    e(f"  s_mul_i32 s{sBase}, s{sBase}, {SPAN}")
    e(f"  s_lshr_b32 s{sCls}, s{sWave}, 2")
    e(f"  s_xor_b32 s{sCls}, s{sCls}, s{sM}")
    tileoff(sQ, sWave, sCls)
    for k in range(1, D):
        e(f"  s_add_u32 s{sQ+k}, s{sQ+k-1}, {STEP}")
    e(f"  s_mul_i32 s{sRingLo}, s{sWave}, {D*TILE}")
    e(f"  s_add_u32 s{sRingLo}, s{sRingLo}, {RING}")
    e(f"  s_mov_b32 s14, {TOTAL}")
    e(f"  s_mov_b32 s15, 0x20000")
    e(f"  v_mov_b32 v{vCTL}, {CTL}")
    e(f"  s_cmp_lg_u32 s{sWave}, 0")
    e(f"  s_cbranch_scc1 L_notw0")
    e(f"  v_mov_b32 v{TMP}, {8*D}")
    e(f"  v_mov_b32 v{TMP+1}, 2")
    e(f"  ds_write_b64 v{vCTL}, v[{TMP}:{TMP+1}]")
    e(f"  s_add_u32 s60, s{sBase}, {pspan*STEP}")
    e(f"  s_lshl_b32 s61, s{sM}, 10")
    e(f"  s_add_u32 s60, s60, s61")
    e(f"  s_lshl_b32 s61, s{sP}, 13")
    e(f"  s_and_b32 s61, s61, 8192")
    e(f"  s_add_u32 s60, s60, s61")
    e(f"  v_mov_b32 v{TMP+2}, s60")
    e(f"  v_xor_b32 v{TMP+3}, 8192, v{TMP+2}")
    e(f"  s_and_b32 s{sSh}, s{sP}, 1")
    e(f"  s_lshl_b32 s{sSh}, s{sSh}, 1")
    e(f"  s_or_b32 s{sSh}, s{sSh}, s{sM}")
    e(f"  s_lshl_b32 s{sSh}, s{sSh}, 3")
    e(f"  s_lshr_b32 s62, s{sP}, 1")
    e(f"  s_lshl_b32 s62, s62, 2")
    e(f"  s_mov_b64 exec, 1")
    e(f"  s_branch L_probe")
    e(".p2align 6")
    e("L_probe:")
    e(f"  s_waitcnt lgkmcnt(0)")
    e(f"  s_barrier")
    e(f"  global_load_dword v{TMP}, v{TMP+2}, s[4:5] {pf}")
    e(f"  global_load_dword v{TMP+1}, v{TMP+3}, s[4:5] {pf}")
    if diag is not None and diag >= 8: e(f"  s_memtime s[78:79]")
    e(f"  s_waitcnt vmcnt(1)")
    e(f"  s_memtime s[54:55]")
    e(f"  s_waitcnt vmcnt(0)")
    e(f"  s_memtime s[56:57]")
    e(f"  s_mov_b64 exec, -1")
    e(f"  s_lshr_b32 s61, s60, 8")
    e(f"  s_xor_b32 s60, s60, s61")
    e(f"  s_waitcnt lgkmcnt(0)")
    e(f"  s_sub_u32 s61, s56, s54")
    if diag is not None and diag >= 8:
        e(f"  s_sub_u32 s78, s54, s78")
        e(f"  s_mov_b32 s79, s61")
    if stamps:
        e(f"  v_writelane_b32 v11, s61, 56")
        e(f"  s_lshr_b32 s63, s60, 13")
        e(f"  v_writelane_b32 v11, s63, 63")
    if force is None:
        e(f"  s_cmp_lt_u32 s61, {thr}")
        e(f"  s_cselect_b32 s61, 8192, 0")
        e(f"  s_xor_b32 s61, s61, s60")
        e(f"  s_bfe_u32 s61, s61, 0x1000d")
    else:
        e(f"  s_getreg_b32 s61, hwreg(HW_REG_XCC_ID)")
        e(f"  s_bfe_u32 s61, s61, 0x10002")
        e(f"  s_xor_b32 s61, s61, {force}")
    if stamps: e(f"  v_writelane_b32 v11, s61, 57")
    e(f"  s_or_b32 s63, s61, 2")
    e(f"  s_lshl_b32 s63, s63, s{sSh}")
    e(f"  s_atomic_or s63, s[{sDbg}:{sDbg+1}], s62 glc")
    e(f"  s_mov_b32 s12, s4")
    e(f"  s_mov_b32 s13, s5")
    e(f"  s_branch L_xload")
    e("L_notw0:")
    e(f"  s_mov_b32 s22, 18432")
    e(f"  s_mov_b32 s23, 0x20000")
    e(f"  s_mul_i32 s60, s{sWave}, 5120")
    e(f"  s_sub_u32 s60, s60, 5120")
    e(f"  s_mov_b32 m0, s60")
    e(f"  s_waitcnt lgkmcnt(0)")
    e(f"  s_barrier")
    e(f"  s_mov_b32 s20, s8")
    e(f"  s_mov_b32 s21, s9")
    e(f"  s_mov_b32 s12, s4")
    e(f"  s_mov_b32 s13, s5")
    e(f"  s_cmp_gt_u32 s{sWave}, 4")
    e(f"  s_cbranch_scc1 L_xload")
    for k in range(3):
        e(f"  buffer_load_dwordx4 v{vD0}, s[20:23], s60 offen offset:{k*1024} lds")
    e(f"  s_cmp_eq_u32 s{sWave}, 4")
    e(f"  s_cbranch_scc1 L_dw")
    e(f"  buffer_load_dwordx4 v{vD0}, s[20:23], s60 offen offset:3072 lds")
    e(f"  s_add_u32 s60, s60, 4096")
    e(f"  s_mov_b32 m0, s60")
    e(f"  s_nop 0")
    e(f"  buffer_load_dwordx4 v{vD0}, s[20:23], s60 offen lds")
    e(f"  s_branch L_xload")
    e("L_dw:")
    e(f"  s_mov_b32 m0, {DWA}")
    e(f"  s_mov_b32 s20, s6")
    e(f"  s_mov_b32 s21, s7")
    e(f"  s_mov_b32 s22, 192")
    e(f"  buffer_load_dwordx4 v{vD0}, s[20:23], 0 offen lds")
    e("L_xload:")
    e(f"  s_mov_b32 s{sSlot}, s{sRingLo}")
    for k in range(D):
        e(f"  s_mov_b32 m0, s{sSlot}")
        e(f"  s_add_u32 s{sSlot}, s{sSlot}, {TILE}")
        loads(sQ+k)
    stamp(1) if False else None
    e(f"  s_mov_b32 s{sRingHi}, s{sSlot}")
    e(f"  s_mov_b32 s{sSlot}, s{sRingLo}")
    e(f"  s_mov_b32 s16, s10")
    e(f"  s_mov_b32 s17, s11")
    e(f"  s_mov_b32 s18, {TOTAL}")
    e(f"  s_mov_b32 s19, 0x20000")
    e(f"  s_mov_b32 s{sMask}, 0xffff0000")
    e(f"  s_mov_b32 s{sI}, 0")
    e(f"  s_mov_b32 s{sCls}, 2")
    if not dyn:
        e(f"  s_add_u32 s{sN}, s{sWave}, {8*(D-1)}")
    t0, t1, t2 = TMP, TMP+1, TMP+2
    e(f"  s_mul_i32 s{sT}, s{sWave}, {TILE}")
    e(f"  s_add_u32 s{sT}, s{sT}, {OUTA}")
    e(f"  v_mov_b32 v{vONE}, 1")
    e(f"  v_and_b32 v{vT}, 48, v0              ; g*16")
    e(f"  v_and_b32 v{t0}, 15, v0              ; j")
    e(f"  v_mul_u32_u24 v{t1}, 192, v{t0}      ; j*192")
    e(f"  v_and_b32 v{t2}, 8, v0")
    e(f"  v_lshlrev_b32 v{t2}, 2, v{t2}        ; f(j)*16 = (j&8)<<2")
    e(f"  v_xor_b32 v{t2}, v{t2}, v{vT}        ; (g^f)*16")
    e(f"  v_add_u32 v{vBB}, v{t1}, v{t2}")
    e(f"  v_and_b32 v{t2}, 6, v0")
    e(f"  v_lshlrev_b32 v{t2}, 3, v{t2}        ; fo(j)*16 = ((j>>1)&3)<<4")
    e(f"  v_xor_b32 v{t2}, v{t2}, v{vT}")
    e(f"  v_add3_u32 v{vOW}, v{t1}, v{t2}, s{sT}")
    for q, vr in enumerate((vOR0, vOR1, vOR2)):
        e(f"  v_add_u32 v{t0}, {q*64}, v0          ; P")
        e(f"  v_mul_u32_u24 v{t1}, 171, v{t0}")
        e(f"  v_bfe_u32 v{t1}, v{t1}, 12, 2        ; ((P/12)>>1)&3")
        e(f"  v_xor_b32 v{t0}, v{t0}, v{t1}")
        e(f"  v_lshl_add_u32 v{vr}, v{t0}, 4, s{sT}")
    e(f"  v_lshrrev_b32 v{t0}, 1, v{vT}        ; 8g")
    e(f"  v_bfe_u32 v{t1}, v0, 2, 2            ; r'")
    e(f"  v_add_u32 v{t0}, v{t0}, v{t1}")
    e(f"  v_mul_u32_u24 v{t0}, 192, v{t0}")
    e(f"  v_and_b32 v{t1}, 3, v0")
    e(f"  v_lshl_add_u32 v{t0}, v{t1}, 4, v{t0}")
    e(f"  s_waitcnt vmcnt({3*D})")
    if stamps:
        e(f"  s_cmp_eq_u32 s{sWave}, 0")
        e(f"  s_cbranch_scc1 L_st2")
        stamp(2)
        e("L_st2:")
    e(f"  s_barrier                             ; barrier 1")
    for s in range(3):
        e(f"  ds_read_b128 v[{R+4*s}:{R+4*s+3}], v{vT} offset:{DWA+s*64}")
    for s in range(3):
        for n in range(6):
            m, b = n >> 1, n & 1
            for u in range(2):
                r = WT + (n*3+s)*4 + 2*u
                e(f"  ds_read_b64_tr_b16 v[{r}:{r+1}], v{t0} offset:{WTA + s*6144 + u*768 + m*64 + b*8}")
    e(f"  s_waitcnt lgkmcnt(0)")
    for w in range(12):
        e(f"  v_lshlrev_b32 v{DW+2*w}, 16, v{R+w}")
        e(f"  v_and_b32 v{DW+2*w+1}, s{sMask}, v{R+w}")
    e(f"  s_cmp_lg_u32 s{sWave}, 0")
    e(f"  s_cbranch_scc1 L_nopub")
    e(f"  s_xor_b32 s{sSh}, s{sSh}, 8")
    e(f"  s_lshr_b32 s63, s63, s{sSh}")
    e(f"  s_xor_b32 s62, s63, 1")
    e(f"  s_and_b32 s62, s62, 1")
    e(f"  s_bitcmp1_b32 s63, 1")
    e(f"  s_cselect_b32 s61, s62, s61")
    e(f"  v_mov_b32 v{TMP}, s61")
    e(f"  ds_write_b32 v{vCTL}, v{TMP} offset:4")
    e("L_nopub:")
    if diag is not None:
        e(f"  s_memrealtime s[72:73]")
        e(f"  s_waitcnt lgkmcnt(0)")
    stamp(3)
    if stamps:
        e(f"  s_getreg_b32 s56, hwreg(HW_REG_XCC_ID)")
        e(f"  s_getreg_b32 s57, hwreg(HW_REG_HW_ID)")
        e(f"  v_writelane_b32 v11, s56, 4")
        e(f"  v_writelane_b32 v11, s57, 5")
    seq = [("L", k) for k in range(D)]
    N = []
    for i in range(D+3):
        idx = seq.index(("L", i))
        N.append(3*(len(seq)-1-idx))
        if late:
            seq.append(("S", i)); seq.append(("L", i+D))
        else:
            seq.append(("L", i+D)); seq.append(("S", i))
    while len(N) > 1 and N[-1] == N[-2]: N.pop()
    def grab_issue():
        if dyn:
            e(f"  v_readfirstlane_b32 s{sN}, v{vN}")
        else:
            e(f"  s_add_u32 s{sN}, s{sN}, 8")
        e(f"  s_cmp_eq_u32 s{sCls}, 2")
        e(f"  s_cbranch_scc1 L_poll")
        e("L_polled:")
        tileoff(sQ+D, sN, sCls)
        e(f"  s_cmp_ge_u32 s{sN}, {8*T}")
        e(f"  s_cbranch_scc1 L_nomore")
        loads(sQ+D)
        e("L_issued:")
    e(f"  s_mov_b32 s{sBC}, {N[0]}")
    e(f"  s_mov_b32 s{sND}, 0")
    e("L_loop:")
    e(f"  v_add_u32 v{vBR}, s{sSlot}, v{vBB}")
    if dyn:
        e(f"  s_mov_b64 exec, 1")
        e(f"  ds_add_rtn_u32 v{vN}, v{vCTL}, v{vONE}")
        e(f"  s_mov_b64 exec, -1")
    for a, b in zip(N, N[1:]): assert b == a + 3
    e(f"  s_sub_u32 s{sT}, s{sBC}, s{sND}")
    e(f"  s_cmp_lg_u32 s{sT}, {N[-1]}")
    e(f"  s_cbranch_scc1 L_wait")
    e(f"  s_waitcnt vmcnt({N[-1]})")
    e("L_body:")
    stamp(8, sI)
    for s in range(3):
        e(f"  ds_read_b128 v[{B+4*s}:{B+4*s+3}], v{vBR} offset:{s*64}")
    e(f"  s_mov_b32 m0, s{sSlot}")
    e(f"  s_add_u32 s{sSlot}, s{sSlot}, {TILE}")
    e(f"  s_cmp_eq_u32 s{sSlot}, s{sRingHi}")
    e(f"  s_cselect_b32 s{sSlot}, s{sRingLo}, s{sSlot}")
    if late:
        e(f"  s_waitcnt lgkmcnt(2)")
    else:
        e(f"  s_waitcnt lgkmcnt(0)")
        grab_issue()
    def scale(s):
        ops = []
        for w in range(4):
            x = B+4*s+w
            d = DW + 2*(4*s+w)
            ta = TMP + 2*(w & 1)
            ops.append(f"  v_lshlrev_b32 v{ta}, 16, v{x}")
            ops.append(f"  v_and_b32 v{ta+1}, s{sMask}, v{x}")
            ops.append(f"  v_mul_f32 v{ta}, v{ta}, v{d}")
            ops.append(f"  v_mul_f32 v{ta+1}, v{ta+1}, v{d+1}")
            ops.append(f"  v_cvt_pk_bf16_f32 v{x}, v{ta}, v{ta+1}")
        return ops
    def mfma(s, n):
        a = WT + (n*3+s)*4
        c = "0" if s == 0 else f"v[{ACC+4*n}:{ACC+4*n+3}]"
        return f"  v_mfma_f32_16x16x32_bf16 v[{ACC+4*n}:{ACC+4*n+3}], v[{a}:{a+3}], v[{B+4*s}:{B+4*s+3}], {c}"
    for x in scale(0): e(x)
    if late: e(f"  s_waitcnt lgkmcnt(0)")
    for s in range(3):
        nxt = scale(s+1) if s < 2 else []
        pre = nxt[:2]; nxt = nxt[2:]
        if pre:
            for x in pre: e(x)
        else:
            e("  s_nop 1")
        per = -(-len(nxt)//6)
        for n in range(6):
            e(mfma(s, n))
            for x in nxt[n*per:(n+1)*per]: e(x)
    e("  s_nop 2")
    for m in range(3):
        for b in range(2):
            n = 2*m+b
            e(f"  v_cvt_pk_bf16_f32 v{O+4*m+2*b}, v{ACC+4*n}, v{ACC+4*n+1}")
            e(f"  v_cvt_pk_bf16_f32 v{O+4*m+2*b+1}, v{ACC+4*n+2}, v{ACC+4*n+3}")
        e(f"  ds_write_b128 v{vOW}, v[{O+4*m}:{O+4*m+3}] offset:{m*64}")
    e(f"  s_waitcnt lgkmcnt(0)")
    for q, vr in enumerate((vOR0, vOR1, vOR2)):
        e(f"  ds_read_b128 v[{R+4*q}:{R+4*q+3}], v{vr}")
    for q in range(3):
        e(f"  s_waitcnt lgkmcnt({2-q})")
        e(f"  buffer_store_dwordx4 v[{R+4*q}:{R+4*q+3}], v{vD0}, s[16:19], s{sQ} offen offset:{q*1024} {stf}")
    stamp(32, sI)
    if late: grab_issue()
    for k in range(D):
        e(f"  s_mov_b32 s{sQ+k}, s{sQ+k+1}")
    if stamps: e(f"  s_add_u32 s{sI}, s{sI}, 1")
    e(f"  s_add_u32 s{sBC}, s{sBC}, 3")
    e(f"  s_min_u32 s{sBC}, s{sBC}, {N[-1]}")
    e(f"  s_cmp_lt_u32 s{sQ}, {TOTAL}")
    e(f"  s_cbranch_scc1 L_loop")
    if stamps:
        stamp(6)
        e(f"  s_waitcnt vmcnt(0)")
        stamp(7)
        e(f"  v_writelane_b32 v11, s{sCls}, 58")
        e(f"  v_writelane_b32 v11, s{sI}, 1")
        e(f"  s_mul_i32 s{sT}, s2, {W}")
        e(f"  s_add_u32 s{sT}, s{sT}, s{sWave}")
        e(f"  s_lshl_b32 s{sT}, s{sT}, 8")
        e(f"  v_lshlrev_b32 v{TMP}, 2, v0")
        e(f"  v_add_u32 v{TMP}, s{sT}, v{TMP}")
        e(f"  global_store_dword v{TMP}, v11, s[52:53]")
    if diag is not None:
        e(f"  s_waitcnt vmcnt(0)")
        e(f"  s_memrealtime s[74:75]")
        e(f"  s_waitcnt lgkmcnt(0)")
        e(f"  s_cmp_lg_u32 s{sWave}, {7 if diag < 8 else 0}")
        e(f"  s_cbranch_scc1 L_dg1")
        e(f"  v_mov_b32 v{R}, s70")
        e(f"  v_mov_b32 v{R+1}, s72")
        e(f"  v_mov_b32 v{R+2}, s74")
        e(f"  v_mov_b32 v{R+3}, s{sCls if diag < 8 else (78 if diag in (9, 13, 14, 15, 16) else 79)}")
        e(f"  s_lshl_b32 s{sT}, s2, 4")
        e(f"  v_mov_b32 v{TMP}, s{sT}")
        e(f"  global_store_dwordx4 v{TMP}, v[{R}:{R+3}], s[52:53] sc0 sc1")
        e(f"  s_endpgm")
        e("L_dg1:")
        if diag >= 8: e(f"  s_xor_b32 s{sWave}, s{sWave}, 7")
        e(f"  s_or_b32 s{sT}, s{sWave}, s2")
        e(f"  s_cmp_lg_u32 s{sT}, 0")
        e(f"  s_cbranch_scc1 L_end")
        e("L_dg2:")
        e(f"  s_memrealtime s[74:75]")
        e(f"  s_waitcnt lgkmcnt(0)")
        e(f"  s_sub_u32 s{sT}, s74, s70")
        e(f"  s_cmp_lt_u32 s{sT}, 4000")
        e(f"  s_cbranch_scc1 L_dg2")
        for k in range(4):
            e(f"  global_load_dwordx4 v[{ACC+4*k}:{ACC+4*k+3}], v{vD0}, s[52:53] offset:{k*1024} sc0 sc1")
        e(f"  v_lshlrev_b32 v{TMP}, 2, v0")
        e(f"  global_load_dword v{TMP+1}, v{TMP}, s[{sDbg}:{sDbg+1}] sc0 sc1")
        e(f"  s_waitcnt vmcnt(0)")
        e(f"  s_sub_u32 s{sT}, s70, 1000")
        for k in range(4):
            for j in range(3):
                e(f"  v_subrev_u32 v{ACC+4*k+j}, s{sT}, v{ACC+4*k+j}")
            if diag < 8: e(f"  v_sub_u32 v{ACC+4*k+3}, v{ACC+4*k+1}, v{ACC+4*k}")
            elif diag == 8:
                e(f"  v_cmp_gt_u32 vcc, 16, v{ACC+4*k+3}")
                e(f"  s_nop 1")
                e(f"  v_cndmask_b32 v{ACC+4*k+3}, 0, 5, vcc")
            elif diag == 12:
                e(f"  v_cmp_gt_u32 vcc, 16, v{ACC+4*k+3}")
                e(f"  s_nop 1")
                e(f"  v_cndmask_b32 v{ACC+4*k+3}, 5, 0, vcc")
            elif diag in (13, 14, 15, 16):
                lim = {13: 500, 14: 800, 15: 1000, 16: 1300}[diag]
                e(f"  v_cmp_gt_u32 vcc, {lim}, v{ACC+4*k+3}")
                e(f"  s_nop 1")
                e(f"  v_cndmask_b32 v{ACC+4*k+3}, 0, 5, vcc")
            elif diag == 11:
                e(f"  v_sub_u32 v{ACC+4*k+3}, v{ACC+4*k+1}, v{ACC+4*k}")
        def red(op, j, dst):
            e(f"  v_{op}_u32 v{R}, v{ACC+j}, v{ACC+4+j}")
            e(f"  v_{op}_u32 v{R}, v{R}, v{ACC+8+j}")
            e(f"  v_{op}_u32 v{R}, v{R}, v{ACC+12+j}")
            e(f"  s_nop 1")
            e(f"  v_readlane_b32 s{dst}, v{R}, 0")
            for l in range(1, 64):
                e(f"  v_readlane_b32 s{sU}, v{R}, {l}")
                sop = {"min":"s_min_u32","max":"s_max_u32","add":"s_add_u32"}[op]
                e(f"  {sop} s{dst}, s{dst}, s{sU}")
        if diag == 0:
            e(f"  s_mov_b32 s76, 0")
        elif diag == 1:
            red("max", 2, 76); red("min", 0, 77); e("  s_sub_u32 s76, s76, s77")
        elif diag == 2:
            red("max", 0, 76); red("min", 0, 77); e("  s_sub_u32 s76, s76, s77")
        elif diag == 3:
            e(f"  v_lshrrev_b32 v{TMP}, 8, v{TMP+1}")
            e(f"  v_xor_b32 v{TMP}, v{TMP}, v{TMP+1}")
            e(f"  v_and_b32 v{TMP+1}, 1, v{TMP}")
            e(f"  v_cmp_eq_u32 vcc, 0, v{TMP+1}")
            e(f"  s_nop 4")
            e(f"  s_bcnt1_i32_b64 s76, vcc")
            e(f"  v_and_b32 v{TMP+1}, 0x10000, v{TMP}")
            e(f"  v_cmp_eq_u32 vcc, 0, v{TMP+1}")
            e(f"  s_nop 4")
            e(f"  s_bcnt1_i32_b64 s77, vcc")
            e(f"  s_add_u32 s76, s76, s77")
            e(f"  s_mul_i32 s76, s76, 10")
        elif diag == 4:
            red("add", 3, 76); e("  s_lshr_b32 s76, s76, 8")
        elif diag == 5:
            red("min", 0, 77); e("  s_sub_u32 s76, 1000, s77")
        elif diag == 6:
            red("add", 2, 76); e("  s_lshr_b32 s76, s76, 8"); red("min", 0, 77); e("  s_sub_u32 s76, s76, s77")
        elif diag == 7:
            red("add", 0, 76); e("  s_lshr_b32 s76, s76, 8"); red("min", 0, 77); e("  s_sub_u32 s76, s76, s77")
        elif diag in (8, 12, 13, 14, 15, 16): red("add", 3, 76)
        elif diag in (9, 10, 11): red("add", 3, 76); e("  s_lshr_b32 s76, s76, 8")
        if pop is not None:
            e(f"  v_mov_b32 v{TMP}, 0x100000")
            e(f"  global_load_dword v{TMP+1}, v{TMP}, s[52:53] offset:2048")
            e(f"  s_waitcnt vmcnt(0)")
            e(f"  s_memtime s[72:73]")
            e(f"  s_waitcnt lgkmcnt(0)")
            e(f"  global_load_dword v{TMP+1}, v{TMP}, s[52:53]")
            e(f"  s_waitcnt vmcnt(0)")
            e(f"  s_memtime s[74:75]")
            e(f"  s_waitcnt lgkmcnt(0)")
            e(f"  s_sub_u32 s72, s74, s72")
            e(f"  s_add_u32 s76, s76, 500")
            e(f"  s_cmp_lt_u32 s72, 700")
            if pop == 1: e(f"  s_cselect_b32 s76, s76, 0")
            else: e(f"  s_cselect_b32 s76, 0, s76")
        e(f"  s_min_u32 s76, s76, 5000")
        e(f"  s_add_u32 s76, s76, 4500")
        e("L_dg3:")
        e(f"  s_memrealtime s[74:75]")
        e(f"  s_waitcnt lgkmcnt(0)")
        e(f"  s_sub_u32 s{sT}, s74, s70")
        e(f"  s_cmp_lt_u32 s{sT}, s76")
        e(f"  s_cbranch_scc1 L_dg3")
    e("L_end:")
    e("  s_endpgm")
    e("L_wait:")
    for n in range(N[-1]-3, 0, -3):
        e(f"  s_waitcnt vmcnt({n})")
        e(f"  s_cmp_eq_u32 s{sT}, {n}")
        e(f"  s_cbranch_scc1 L_body")
    e(f"  s_waitcnt vmcnt(0)")
    e(f"  s_branch L_body")
    e("L_nomore:")
    e(f"  s_mov_b32 s{sQ+D}, {TOTAL}")
    e(f"  s_add_u32 s{sND}, s{sND}, 3")
    e(f"  s_branch L_issued")
    e("L_poll:")
    e(f"  ds_read_b32 v{TMP}, v{vCTL} offset:4")
    e(f"  s_waitcnt lgkmcnt(0)")
    e(f"  v_readfirstlane_b32 s{sCls}, v{TMP}")
    e(f"  s_cmp_eq_u32 s{sCls}, 2")
    e(f"  s_cbranch_scc1 L_poll")
    e(f"  s_branch L_polled")
    e('.section .rodata,"a"')
    e(".p2align 6")
    e(f".amdhsa_kernel {NAME}")
    e(f"  .amdhsa_next_free_vgpr {NV}")
    e(f"  .amdhsa_next_free_sgpr 84")
    e(f"  .amdhsa_accum_offset {(NV+3)//4*4}")
    e("  .amdhsa_group_segment_fixed_size 0")
    e("  .amdhsa_kernarg_size 48")
    e("  .amdhsa_user_sgpr_count 2")
    e("  .amdhsa_user_sgpr_kernarg_segment_ptr 1")
    e("  .amdhsa_system_sgpr_workgroup_id_x 1")
    e("  .amdhsa_float_denorm_mode_32 3")
    e(".end_amdhsa_kernel")
    return "\n".join(o) + "\n"

if __name__ == "__main__":
    ap = argparse.ArgumentParser()
    ap.add_argument("-o", required=True)
    ap.add_argument("--G", type=int, default=16)
    ap.add_argument("--D", type=int, default=2)
    ap.add_argument("--early", action="store_true")
    ap.add_argument("--static", action="store_true")
    ap.add_argument("--thr", type=int, default=16)
    ap.add_argument("--ldf", default="nt")
    ap.add_argument("--stf", default="sc0 sc1")
    ap.add_argument("--force", type=int, default=None)
    ap.add_argument("--stamps", action="store_true")
    ap.add_argument("--diag", type=int, default=None)
    ap.add_argument("--pop", type=int, default=None)
    ap.add_argument("--pf", default="nt")
    ap.add_argument("--pspan", type=int, default=None)
    a = ap.parse_args()
    open(a.o, "w").write(gen(a.G, a.D, not a.early, not a.static, a.thr, a.ldf, a.stf, a.force, a.stamps, diag=a.diag, pop=a.pop, pf=a.pf, pspan=a.pspan))
```

```python
import sys, argparse
from gen1 import HEADER, NAME, TOTAL, TILE

def gen(G=16, RES=1, S=4, thr=16, ldf="nt", stf="sc0 sc1", force=None, stamps=False, lds_min=84000,
        pf="nt", cpf=True, nlines=1, pk=False, diag=None, pop=None, endbar=False, dummy=0):
    W = 8; NWG = 256; T = 8
    NB = 1 + RES
    assert NB < S <= T
    SPAN = 16*TILE
    STEP = G*SPAN
    ROWS = G*(T-S)
    NG = 128//G
    LG = G.bit_length()-1
    WTA = 0; DWA = 18432; OUTA = 20480
    RING = OUTA + W*TILE
    CTL = RING + W*NB*TILE
    lds = max(CTL + 64, lds_min)
    assert lds <= 163840
    o = []
    e = o.append
    e(HEADER + f"; @launch grid=({NWG},1,1) block=({W*64},1,1) lds={lds}")
    e('.amdgcn_target "amdgcn-amd-amdhsa--gfx950"')
    e(".text")
    e(f".globl {NAME}")
    e(".p2align 8")
    e(f".type {NAME},@function")
    e(f"{NAME}:")
    vD0, vD1, vD2, vBR, vOW, vOR0, vOR1, vOR2, vT, vCTL = 1,2,3,4,5,6,7,8,9,10
    B = 12; ACC = 24; O = 48; R = 60; DW = 72; TMP = 96; WT = 100
    NV = 172
    sWave, sBase, sI, sMask, sRing, sT, sU, sCls, sM, sTab, sTk, sSpan = 28,29,30,32,33,35,36,37,38,39,40,41
    sP = 42; sMode = 24; sCtr = 25; sInc = 26; sGrp = 27; sK = 31; sSt = 34; sSh = 58; sRdy = 59
    sCur = 64; sNext = 65; sRes = 66; sSave = 67
    sDbg = 44; sWs = 46
    KPOLL = max(S-2, NB)
    def stamp(j, dynr=None):
        if not stamps: return
        e(f"  s_memrealtime s[48:49]")
        if dynr is not None:
            e(f"  s_min_u32 s50, s{dynr}, 11")
            e(f"  s_add_u32 s50, s50, {j}")
            e(f"  s_mov_b32 s51, m0")
            e(f"  s_mov_b32 m0, s50")
        e(f"  s_waitcnt lgkmcnt(0)")
        if dynr is not None:
            e(f"  v_writelane_b32 v11, s48, m0")
            e(f"  s_mov_b32 m0, s51")
        else:
            e(f"  v_writelane_b32 v11, s48, {j}")
    def loads(so):
        for q, vd in enumerate((vD0, vD1, vD2)):
            e(f"  buffer_load_dwordx4 v{vd}, s[12:15], s{so} offen offset:{q*1024} {ldf} lds")
    e(f"  s_cmp_ge_u32 s2, {NWG}")
    e(f"  s_cbranch_scc1 L_end")
    if stamps: e("  v_mov_b32 v11, 0")
    stamp(0)
    if diag is not None: e(f"  s_memrealtime s[70:71]")
    e(f"  s_load_dwordx8 s[4:11], s[0:1], 0")
    e(f"  s_load_dwordx4 s[{sDbg}:{sDbg+3}], s[0:1], 32")
    e(f"  v_lshrrev_b32 v{vT}, 6, v0")
    e(f"  v_and_b32 v0, 63, v0                 ; lane")
    e(f"  v_readfirstlane_b32 s{sWave}, v{vT}")
    e(f"  v_lshlrev_b32 v{vD0}, 4, v0          ; l*16")
    e(f"  s_lshr_b32 s{sGrp}, s2, {LG+1}")
    e(f"  s_mul_i32 s{sBase}, s{sGrp}, {STEP*T}")
    if cpf:
        e(f"  s_cmp_lg_u32 s{sWave}, 7")
        e(f"  s_cbranch_scc1 L_nocpf")
        e(f"  s_getpc_b64 s[56:57]")
        e(f"  v_min_u32 v{TMP}, {nlines-1}, v0")
        e(f"  v_lshlrev_b32 v{TMP}, 7, v{TMP}")
        e(f"  global_load_dword v{ACC}, v{TMP}, s[56:57] offset:64")
        e("L_nocpf:")
    e(f"  v_xor_b32 v{vD2}, 32, v{vD0}         ; (l^2)*16")
    e(f"  v_and_b32 v{vT}, 32, v0")
    e(f"  v_xor_b32 v{vD1}, v{vT}, v{vD0}      ; l>=32 ? (l^2)*16 : l*16")
    e(f"  s_and_b32 s{sT}, s2, {2*G-1}")
    e(f"  s_lshl_b32 s{sT}, s{sT}, 3")
    e(f"  s_add_u32 s{sT}, s{sT}, s{sWave}")
    e(f"  s_mul_i32 s{sCur}, s{sT}, {TILE}")
    e(f"  s_add_u32 s{sCur}, s{sCur}, s{sBase}")
    e(f"  s_mul_i32 s{sRing}, s{sWave}, {NB*TILE}")
    e(f"  s_add_u32 s{sRing}, s{sRing}, {RING}")
    e(f"  s_mov_b32 s14, {TOTAL}")
    e(f"  s_mov_b32 s15, 0x20000")
    e(f"  s_lshr_b32 s{sT}, s2, 1")
    e(f"  s_and_b32 s{sT}, s{sT}, {(G-1) & ~3}")
    e(f"  s_and_b32 s{sP}, s2, 3")
    e(f"  s_or_b32 s{sP}, s{sP}, s{sT}")
    e(f"  s_bfe_u32 s{sM}, s2, 0x10002")
    e(f"  s_cmp_eq_u32 s{sWave}, 0")
    e(f"  s_cbranch_scc1 L_w0")
    e(f"  s_mov_b32 s22, 18432")
    e(f"  s_mov_b32 s23, 0x20000")
    e(f"  s_mul_i32 s60, s{sWave}, 5120")
    e(f"  s_sub_u32 s60, s60, 5120")
    e(f"  s_mov_b32 m0, s60")
    e(f"  s_waitcnt lgkmcnt(0)")
    e(f"  s_barrier")
    e(f"  s_mov_b32 s20, s8")
    e(f"  s_mov_b32 s21, s9")
    e(f"  s_mov_b32 s12, s4")
    e(f"  s_mov_b32 s13, s5")
    e(f"  s_cmp_gt_u32 s{sWave}, 4")
    e(f"  s_cbranch_scc1 L_w567")
    for k in range(3):
        e(f"  buffer_load_dwordx4 v{vD0}, s[20:23], s60 offen offset:{k*1024} lds")
    e(f"  s_cmp_eq_u32 s{sWave}, 4")
    e(f"  s_cbranch_scc1 L_dw")
    e(f"  buffer_load_dwordx4 v{vD0}, s[20:23], s60 offen offset:3072 lds")
    e(f"  s_add_u32 s60, s60, 4096")
    e(f"  s_mov_b32 m0, s60")
    e(f"  s_nop 0")
    e(f"  buffer_load_dwordx4 v{vD0}, s[20:23], s60 offen lds")
    e(f"  s_branch L_xload")
    e("L_dw:")
    e(f"  s_mov_b32 m0, {DWA}")
    e(f"  s_mov_b32 s20, s6")
    e(f"  s_mov_b32 s21, s7")
    e(f"  s_mov_b32 s22, 192")
    e(f"  buffer_load_dwordx4 v{vD0}, s[20:23], 0 offen lds")
    e("L_xload:")
    e(f"  s_mov_b32 m0, s{sRing}")
    e(f"  s_add_u32 s{sRes}, s{sCur}, {STEP}")
    loads(sCur)
    for k in range(RES):
        e(f"  s_add_u32 s{sT}, s{sRing}, {(k+1)*TILE}")
        e(f"  s_mov_b32 m0, s{sT}")
        e(f"  s_add_u32 s{sU}, s{sRes}, {k*STEP}")
        loads(sU)
    e(f"  s_mov_b32 m0, s{sRing}")
    e(f"  s_mov_b32 s16, s10")
    e(f"  s_mov_b32 s17, s11")
    e(f"  s_mov_b32 s18, {TOTAL}")
    e(f"  s_mov_b32 s19, 0x20000")
    e(f"  s_mov_b32 s{sMask}, 0xffff0000")
    if stamps: e(f"  s_mov_b32 s{sI}, 0")
    e(f"  s_mov_b32 s{sCls}, 2")
    e(f"  s_mov_b32 s{sMode}, 0")
    e(f"  s_mov_b32 s{sK}, {NB}")
    e(f"  s_mul_i32 s{sSt}, s{sP}, {SPAN}")
    e(f"  s_add_u32 s{sSt}, s{sSt}, s{sBase}")
    e(f"  s_add_u32 s{sSt}, s{sSt}, {(NB-1)*STEP}")
    e(f"  s_add_u32 s{sBase}, s{sBase}, {S*STEP}")
    e(f"  s_xor_b32 s{sT}, s{sWave}, s{sP}")
    e(f"  s_and_b32 s{sT}, s{sT}, 7")
    e(f"  s_lshl_b32 s{sCtr}, s{sGrp}, 3")
    e(f"  s_or_b32 s{sCtr}, s{sCtr}, s{sT}")
    e(f"  s_lshl_b32 s{sCtr}, s{sCtr}, 8")
    e(f"  s_lshl_b32 s{sT}, s{sT}, 2")
    e(f"  s_lshr_b32 s{sTab}, 0xcb756210, s{sT}")
    t0, t1, t2 = TMP, TMP+1, TMP+2
    e(f"  s_mul_i32 s{sT}, s{sWave}, {TILE}")
    e(f"  s_add_u32 s{sT}, s{sT}, {OUTA}")
    e(f"  v_mov_b32 v{vCTL}, {CTL}")
    e(f"  v_and_b32 v{vT}, 48, v0              ; g*16")
    e(f"  v_and_b32 v{t0}, 15, v0              ; j")
    e(f"  v_mul_u32_u24 v{t1}, 192, v{t0}      ; j*192")
    e(f"  v_and_b32 v{t2}, 8, v0")
    e(f"  v_lshlrev_b32 v{t2}, 2, v{t2}        ; f(j)*16 = (j&8)<<2")
    e(f"  v_xor_b32 v{t2}, v{t2}, v{vT}        ; (g^f)*16")
    e(f"  v_add3_u32 v{vBR}, v{t1}, v{t2}, s{sRing}")
    e(f"  v_and_b32 v{t2}, 6, v0")
    e(f"  v_lshlrev_b32 v{t2}, 3, v{t2}        ; fo(j)*16 = ((j>>1)&3)<<4")
    e(f"  v_xor_b32 v{t2}, v{t2}, v{vT}")
    e(f"  v_add3_u32 v{vOW}, v{t1}, v{t2}, s{sT}")
    for q, vr in enumerate((vOR0, vOR1, vOR2)):
        e(f"  v_add_u32 v{t0}, {q*64}, v0          ; P")
        e(f"  v_mul_u32_u24 v{t1}, 171, v{t0}")
        e(f"  v_bfe_u32 v{t1}, v{t1}, 12, 2        ; ((P/12)>>1)&3")
        e(f"  v_xor_b32 v{t0}, v{t0}, v{t1}")
        e(f"  v_lshl_add_u32 v{vr}, v{t0}, 4, s{sT}")
    e(f"  v_lshrrev_b32 v{t0}, 1, v{vT}        ; 8g")
    e(f"  v_bfe_u32 v{t1}, v0, 2, 2            ; r'")
    e(f"  v_add_u32 v{t0}, v{t0}, v{t1}")
    e(f"  v_mul_u32_u24 v{t0}, 192, v{t0}")
    e(f"  v_and_b32 v{t1}, 3, v0")
    e(f"  v_lshl_add_u32 v{t0}, v{t1}, 4, v{t0}")
    e(f"  s_waitcnt vmcnt({3*NB})")
    e(f"  s_barrier                             ; barrier 1")
    for s in range(3):
        e(f"  ds_read_b128 v[{R+4*s}:{R+4*s+3}], v{vT} offset:{DWA+s*64}")
    for s in range(3):
        for n in range(6):
            m, b = n >> 1, n & 1
            for u in range(2):
                r = WT + (n*3+s)*4 + 2*u
                e(f"  ds_read_b64_tr_b16 v[{r}:{r+1}], v{t0} offset:{WTA + s*6144 + u*768 + m*64 + b*8}")
    e(f"  s_waitcnt lgkmcnt(0)")
    e(f"  s_cmp_lg_u32 s{sWave}, 0")
    e(f"  s_cbranch_scc1 L_nopub")
    e(f"  s_xor_b32 s{sSh}, s{sSh}, 8")
    e(f"  s_lshr_b32 s63, s63, s{sSh}")
    e(f"  s_xor_b32 s62, s63, 1")
    e(f"  s_and_b32 s62, s62, 1")
    e(f"  s_bitcmp1_b32 s63, 1")
    e(f"  s_cselect_b32 s61, s62, s61")
    e(f"  v_mov_b32 v{TMP}, s61")
    e(f"  ds_write_b32 v{vCTL}, v{TMP}")
    e("L_nopub:")
    for w in range(12):
        e(f"  v_lshlrev_b32 v{DW+2*w}, 16, v{R+w}")
        e(f"  v_and_b32 v{DW+2*w+1}, s{sMask}, v{R+w}")
    if diag is not None:
        e(f"  s_memrealtime s[72:73]")
        e(f"  s_waitcnt lgkmcnt(0)")
    stamp(3)
    if stamps:
        e(f"  s_getreg_b32 s56, hwreg(HW_REG_XCC_ID)")
        e(f"  s_getreg_b32 s57, hwreg(HW_REG_HW_ID)")
        e(f"  v_writelane_b32 v11, s56, 4")
        e(f"  v_writelane_b32 v11, s57, 5")
    e("L_loop:")
    e(f"  s_cmp_le_u32 s{sK}, {S}")
    e(f"  s_cbranch_scc1 L_early")
    e("L_req:")
    e(f"  s_mov_b32 s{sTk}, s{sInc}")
    e(f"  s_atomic_add s{sTk}, s[{sWs}:{sWs+1}], s{sCtr} glc")
    e(f"  s_lshl_b32 s{sT}, s{sCls}, 4")
    e(f"  s_waitcnt lgkmcnt(0)")
    e(f"  s_lshr_b32 s{sSpan}, s{sTk}, s{sT}")
    e(f"  s_and_b32 s{sSpan}, s{sSpan}, 0xffff")
    e(f"  s_cmp_ge_u32 s{sSpan}, {ROWS}")
    e(f"  s_cbranch_scc1 L_dry")
    e(f"  s_mul_i32 s{sSpan}, s{sSpan}, {SPAN}")
    e(f"  s_add_u32 s{sSpan}, s{sSpan}, s{sBase}")
    e("L_havespan:")
    e(f"  s_add_u32 s{sU}, s{sSpan}, {SPAN//2}")
    e(f"  s_lshr_b32 s{sU}, s{sU}, 21")
    e(f"  s_xor_b32 s{sU}, s{sU}, s{sCls}")
    e(f"  s_lshl_b32 s{sU}, s{sU}, 3")
    e(f"  s_xor_b32 s{sU}, s{sU}, s{sTab}")
    e(f"  s_and_b32 s{sU}, s{sU}, 15")
    e(f"  s_mul_i32 s{sU}, s{sU}, {TILE}")
    e(f"  s_add_u32 s{sNext}, s{sU}, s{sSpan}")
    if RES != 1:
        e(f"  s_cmp_eq_u32 s{sK}, {NB+1}")
        e(f"  s_cbranch_scc1 L_wait0")
    e(f"  s_waitcnt vmcnt(3)")
    e("L_body:")
    stamp(8, sI)
    for s in range(3):
        e(f"  ds_read_b128 v[{B+4*s}:{B+4*s+3}], v{vBR} offset:{s*64}")
    e(f"  s_cmp_lg_u32 s{sMode}, 0")
    e(f"  s_waitcnt lgkmcnt(0)")
    e(f"  s_cbranch_scc1 L_noload")
    loads(sNext)
    if dummy:
        e(f"  s_branch L_loaded")
        e("L_noload:")
        e(f"  s_sub_u32 s{sNext}, s{sCur}, {85*SPAN + 16384}")
        e(f"  s_cselect_b32 s{sU}, {TOTAL}, 0")
        e(f"  s_add_u32 s{sNext}, s{sNext}, s{sU}")
        for q, vd in list(enumerate((vD0, vD1, vD2)))[:dummy]:
            e(f"  buffer_load_dwordx4 v{vd}, s[12:15], s{sNext} offen offset:{q*1024} {ldf} lds")
        e("L_loaded:")
    else:
        e("L_noload:")
    stamp(20, sI)
    def scale(s):
        ops = []
        for w in range(4):
            x = B+4*s+w
            d = DW + 2*(4*s+w)
            ta = TMP + 2*(w & 1)
            ops.append(f"  v_lshlrev_b32 v{ta}, 16, v{x}")
            ops.append(f"  v_and_b32 v{ta+1}, s{sMask}, v{x}")
            if pk:
                ops.append(f"  v_pk_mul_f32 v[{ta}:{ta+1}], v[{ta}:{ta+1}], v[{d}:{d+1}]")
            else:
                ops.append(f"  v_mul_f32 v{ta}, v{ta}, v{d}")
                ops.append(f"  v_mul_f32 v{ta+1}, v{ta+1}, v{d+1}")
            ops.append(f"  v_cvt_pk_bf16_f32 v{x}, v{ta}, v{ta+1}")
        return ops
    def mfma(s, n):
        a = WT + (n*3+s)*4
        c = "0" if s == 0 else f"v[{ACC+4*n}:{ACC+4*n+3}]"
        return f"  v_mfma_f32_16x16x32_bf16 v[{ACC+4*n}:{ACC+4*n+3}], v[{a}:{a+3}], v[{B+4*s}:{B+4*s+3}], {c}"
    for x in scale(0): e(x)
    for s in range(3):
        nxt = scale(s+1) if s < 2 else []
        pre = nxt[:2]; nxt = nxt[2:]
        if pre:
            for x in pre: e(x)
        else:
            e("  s_nop 1")
        per = -(-len(nxt)//6)
        for n in range(6):
            e(mfma(s, n))
            for x in nxt[n*per:(n+1)*per]: e(x)
    e("  s_nop 2")
    for m in range(3):
        for b in range(2):
            n = 2*m+b
            e(f"  v_cvt_pk_bf16_f32 v{O+4*m+2*b}, v{ACC+4*n}, v{ACC+4*n+1}")
            e(f"  v_cvt_pk_bf16_f32 v{O+4*m+2*b+1}, v{ACC+4*n+2}, v{ACC+4*n+3}")
        e(f"  ds_write_b128 v{vOW}, v[{O+4*m}:{O+4*m+3}] offset:{m*64}")
    e(f"  s_waitcnt lgkmcnt(0)")
    if endbar:
        e(f"  s_cmp_eq_u32 s{sMode}, {RES+1}")
        e(f"  s_cbranch_scc0 L_nobar")
        e(f"  s_barrier")
        e("L_nobar:")
    stamp(44, sI)
    for q, vr in enumerate((vOR0, vOR1, vOR2)):
        e(f"  ds_read_b128 v[{R+4*q}:{R+4*q+3}], v{vr}")
    for q in range(3):
        e(f"  s_waitcnt lgkmcnt({2-q})")
        e(f"  buffer_store_dwordx4 v[{R+4*q}:{R+4*q+3}], v{vD0}, s[16:19], s{sCur} offen offset:{q*1024} {stf}")
    stamp(32, sI)
    if stamps: e(f"  s_add_u32 s{sI}, s{sI}, 1")
    e(f"  s_mov_b32 s{sCur}, s{sNext}")
    e(f"  s_cmp_eq_u32 s{sMode}, 0")
    e(f"  s_cbranch_scc1 L_loop")
    e("L_drain:")
    e(f"  s_add_u32 s{sMode}, s{sMode}, 1")
    e(f"  s_cmp_gt_u32 s{sMode}, {RES+1}")
    e(f"  s_cbranch_scc1 L_done")
    if RES > 0:
        e(f"  s_cmp_eq_u32 s{sMode}, {RES+1}")
        e(f"  s_cbranch_scc1 L_last")
        e(f"  s_mov_b32 s{sCur}, s{sRes}")
        e(f"  s_add_u32 s{sRes}, s{sRes}, {STEP}")
        e(f"  v_add_u32 v{vBR}, {TILE}, v{vBR}")
        e(f"  s_branch L_body")
        e("L_last:")
        e(f"  v_subrev_u32 v{vBR}, {RES*TILE}, v{vBR}")
    e(f"  s_mov_b32 s{sCur}, s{sSave}")
    e(f"  s_waitcnt vmcnt({3+3*RES})")
    e(f"  s_branch L_body")
    e("L_done:")
    if stamps:
        stamp(6)
        e(f"  s_waitcnt vmcnt(0)")
        stamp(7)
        e(f"  s_nop 1")
        e(f"  v_readlane_b32 s52, v11, 0")
        e("L_hold:")
        e(f"  s_sleep 32")
        e(f"  s_memrealtime s[48:49]")
        e(f"  s_waitcnt lgkmcnt(0)")
        e(f"  s_sub_u32 s48, s48, s52")
        e(f"  s_cmp_lt_u32 s48, 2500")
        e(f"  s_cbranch_scc1 L_hold")
        e(f"  v_writelane_b32 v11, s{sCls}, 58")
        e(f"  v_writelane_b32 v11, s{sI}, 1")
        e(f"  s_mul_i32 s{sT}, s2, {W}")
        e(f"  s_add_u32 s{sT}, s{sT}, s{sWave}")
        e(f"  s_lshl_b32 s{sT}, s{sT}, 8")
        e(f"  s_add_u32 s{sT}, s{sT}, 0x100000")
        e(f"  v_lshlrev_b32 v{TMP}, 2, v0")
        e(f"  v_add_u32 v{TMP}, s{sT}, v{TMP}")
        e(f"  global_store_dword v{TMP}, v11, s[{sWs}:{sWs+1}]")
    e("L_end:")
    e("  s_endpgm")
    if RES != 1:
        e("L_wait0:")
        e(f"  s_waitcnt vmcnt({3*RES})")
        e(f"  s_branch L_body")
    e("L_dry:")
    e(f"  s_xor_b32 s{sT}, s{sT}, 16")
    e(f"  s_lshr_b32 s{sSpan}, s{sTk}, s{sT}")
    e(f"  s_and_b32 s{sSpan}, s{sSpan}, 0xffff")
    e(f"  s_xor_b32 s{sCls}, s{sCls}, 1")
    e(f"  s_lshl_b32 s{sInc}, 1, s{sT}")
    e(f"  s_cmp_lt_u32 s{sSpan}, {ROWS}")
    e(f"  s_cbranch_scc1 L_req")
    e("L_nomore:")
    e(f"  s_mov_b32 s{sSave}, s{sCur}")
    e(f"  s_waitcnt vmcnt(6)")
    e(f"  s_branch L_drain")
    e("L_early:")
    e(f"  s_add_u32 s{sK}, s{sK}, 1")
    e(f"  s_cmp_gt_u32 s{sK}, {S}")
    e(f"  s_cbranch_scc1 L_first")
    e(f"  s_cmp_lg_u32 s{sCls}, 2")
    e(f"  s_cbranch_scc1 L_clsok")
    e("L_pollcls:")
    e(f"  ds_read_b32 v{TMP}, v{vCTL}")
    e(f"  s_waitcnt lgkmcnt(0)")
    e(f"  v_readfirstlane_b32 s{sCls}, v{TMP}")
    e(f"  s_cmp_eq_u32 s{sCls}, 2")
    e(f"  s_cbranch_scc1 L_pollcls")
    e(f"  s_lshl_b32 s{sT}, s{sCls}, 4")
    e(f"  s_lshl_b32 s{sInc}, 1, s{sT}")
    e("L_clsok:")
    e(f"  s_add_u32 s{sSt}, s{sSt}, {STEP}")
    e(f"  s_mov_b32 s{sSpan}, s{sSt}")
    e(f"  s_cmp_lg_u32 s{sWave}, 1")
    e(f"  s_cbranch_scc1 L_havespan")
    e(f"  s_cmp_lg_u32 s{sK}, {S}")
    e(f"  s_cbranch_scc1 L_havespan")
    e(f"  s_lshl_b32 s62, s{sGrp}, {(256//NG).bit_length()-1}")
    e(f"  s_mov_b32 s60, 0")
    e(f"  s_mov_b32 s61, 1")
    e("L_repoll:")
    e(f"  s_mov_b32 s{sRdy}, 0")
    e(f"  s_atomic_or s{sRdy}, s[{sDbg}:{sDbg+1}], s62 glc")
    e(f"  s_add_u32 s60, s60, 1")
    e(f"  s_waitcnt lgkmcnt(0)")
    e(f"  s_bitcmp1_b32 s{sRdy}, 2")
    e(f"  s_cbranch_scc1 L_ready")
    e(f"  s_sleep 4")
    e(f"  s_cmp_lt_u32 s60, 2000")
    e(f"  s_cbranch_scc1 L_repoll")
    e(f"  s_or_b32 s{sT}, s{sP}, s{sM}")
    e(f"  s_cbranch_scc0 L_repoll")
    e(f"  s_mov_b32 s61, 2")
    e("L_ready:")
    e(f"  v_mov_b32 v{TMP}, s61")
    e(f"  ds_write_b32 v{vCTL}, v{TMP} offset:4")
    e(f"  s_branch L_havespan")
    e("L_first:")
    if S == T:
        e(f"  s_branch L_nomore")
    else:
        e(f"  ds_read_b32 v{TMP}, v{vCTL} offset:4")
        e(f"  s_waitcnt lgkmcnt(0)")
        e(f"  v_readfirstlane_b32 s{sT}, v{TMP}")
        e(f"  s_cmp_eq_u32 s{sT}, 0")
        e(f"  s_cbranch_scc1 L_first")
        e(f"  s_cmp_eq_u32 s{sT}, 1")
        e(f"  s_cbranch_scc1 L_req")
        e(f"  s_branch L_nomore")
    e("L_w567:")
    e(f"  s_xor_b32 s60, s{sWave}, 5")
    e(f"  s_or_b32 s60, s60, s{sP}")
    e(f"  s_or_b32 s60, s60, s{sM}")
    e(f"  s_cbranch_scc1 L_xload")
    e(f"  s_lshl_b32 s60, s{sGrp}, 11")
    e(f"  s_add_u32 s56, s{sWs}, s60")
    e(f"  s_addc_u32 s57, s{sWs+1}, 0")
    for k in range(8):
        e(f"  s_mov_b32 s{72+k}, 0")
        e(f"  s_atomic_swap s{72+k}, s[56:57], {k*256} glc")
    e(f"  s_lshl_b32 s62, s{sGrp}, {(256//NG).bit_length()-1}")
    e(f"  s_mov_b32 s61, 4")
    e(f"  s_waitcnt lgkmcnt(0)")
    e(f"  s_atomic_or s61, s[{sDbg}:{sDbg+1}], s62 glc")
    e(f"  s_branch L_xload")
    e("L_w0:")
    e(f"  s_memtime s[54:55]")
    e(f"  v_mov_b32 v{vCTL}, {CTL}")
    e(f"  v_mov_b32 v{TMP}, 2")
    e(f"  v_mov_b32 v{TMP+1}, 0")
    e(f"  ds_write_b64 v{vCTL}, v[{TMP}:{TMP+1}]")
    e(f"  s_and_b32 s{sSh}, s{sP}, 1")
    e(f"  s_lshl_b32 s{sSh}, s{sSh}, 1")
    e(f"  s_or_b32 s{sSh}, s{sSh}, s{sM}")
    e(f"  s_lshl_b32 s{sSh}, s{sSh}, 3")
    e(f"  s_lshl_b32 s62, s{sGrp}, {LG}")
    e(f"  s_or_b32 s62, s62, s{sP}")
    e(f"  s_lshr_b32 s62, s62, 1")
    e(f"  s_lshl_b32 s62, s62, 2")
    e(f"  s_add_u32 s60, s{sBase}, {STEP*T//2}")
    e(f"  s_mov_b64 exec, 1")
    e(f"  s_waitcnt lgkmcnt(0)")
    assert (STEP*T//2) >= (1 << 21)
    e(f"  s_lshl_b32 s54, s54, 5")
    e(f"  s_and_b32 s54, s54, 0x1fff80")
    e(f"  s_add_u32 s60, s60, s54")
    e(f"  v_mov_b32 v{TMP+2}, s60")
    e(f"  v_xor_b32 v{TMP+3}, 8192, v{TMP+2}")
    e(f"  s_branch L_probe")
    e(".p2align 6")
    e("L_probe:")
    e(f"  s_barrier")
    e(f"  global_load_dword v{R}, v{TMP+2}, s[4:5] {pf}")
    e(f"  global_load_dword v{R+1}, v{TMP+3}, s[4:5] {pf}")
    if stamps: e(f"  s_memtime s[78:79]")
    e(f"  s_waitcnt vmcnt(1)")
    e(f"  s_memtime s[54:55]")
    e(f"  s_waitcnt vmcnt(0)")
    e(f"  s_memtime s[56:57]")
    e(f"  s_mov_b64 exec, -1")
    e(f"  s_lshr_b32 s61, s60, 8")
    e(f"  s_xor_b32 s60, s60, s61")
    e(f"  s_waitcnt lgkmcnt(0)")
    e(f"  s_sub_u32 s61, s56, s54")
    if stamps:
        e(f"  s_sub_u32 s78, s54, s78")
        e(f"  v_writelane_b32 v11, s78, 60")
        e(f"  v_writelane_b32 v11, s61, 56")
        e(f"  s_lshr_b32 s63, s60, 13")
        e(f"  v_writelane_b32 v11, s63, 63")
    if force is None:
        e(f"  s_cmp_lt_u32 s61, {thr}")
        e(f"  s_cselect_b32 s61, 8192, 0")
        e(f"  s_xor_b32 s61, s61, s60")
        e(f"  s_bfe_u32 s61, s61, 0x1000d")
    else:
        e(f"  s_getreg_b32 s61, hwreg(HW_REG_XCC_ID)")
        e(f"  s_bfe_u32 s61, s61, 0x10002")
        e(f"  s_xor_b32 s61, s61, {force}")
    if stamps: e(f"  v_writelane_b32 v11, s61, 57")
    e(f"  s_or_b32 s63, s61, 2")
    e(f"  s_lshl_b32 s63, s63, s{sSh}")
    e(f"  s_atomic_or s63, s[{sDbg}:{sDbg+1}], s62 glc")
    e(f"  s_mov_b32 s12, s4")
    e(f"  s_mov_b32 s13, s5")
    e(f"  s_branch L_xload")
    e('.section .rodata,"a"')
    e(".p2align 6")
    e(f".amdhsa_kernel {NAME}")
    e(f"  .amdhsa_next_free_vgpr {NV}")
    e(f"  .amdhsa_next_free_sgpr 84")
    e(f"  .amdhsa_accum_offset {(NV+3)//4*4}")
    e("  .amdhsa_group_segment_fixed_size 0")
    e("  .amdhsa_kernarg_size 48")
    e("  .amdhsa_user_sgpr_count 2")
    e("  .amdhsa_user_sgpr_kernarg_segment_ptr 1")
    e("  .amdhsa_system_sgpr_workgroup_id_x 1")
    e("  .amdhsa_float_denorm_mode_32 3")
    e(".end_amdhsa_kernel")
    return "\n".join(o) + "\n"

def build(path, **kw):
    import subprocess, tempfile, os
    with tempfile.TemporaryDirectory() as td:
        open(td+"/k.s","w").write(gen(nlines=2, **kw))
        subprocess.check_call(["clang","-x","assembler","-target","amdgcn-amd-amdhsa","-mcpu=gfx950","-c",td+"/k.s","-o",td+"/k.o"])
        subprocess.check_call(["llvm-objcopy","-O","binary","-j",".text",td+"/k.o",td+"/k.bin"])
        size = os.path.getsize(td+"/k.bin")
    n = (size - 128 - 64 - 4)//128 + 1
    assert 1 <= n <= 64
    open(path, "w").write(gen(nlines=n, **kw))

if __name__ == "__main__":
    ap = argparse.ArgumentParser()
    ap.add_argument("-o", required=True)
    ap.add_argument("--G", type=int, default=16)
    ap.add_argument("--RES", type=int, default=1)
    ap.add_argument("--S", type=int, default=5)
    ap.add_argument("--thr", type=int, default=16)
    ap.add_argument("--ldf", default="nt")
    ap.add_argument("--stf", default="sc0 sc1")
    ap.add_argument("--force", type=int, default=None)
    ap.add_argument("--stamps", action="store_true")
    ap.add_argument("--nocpf", action="store_true")
    ap.add_argument("--pk", action="store_true")
    ap.add_argument("--endbar", action="store_true")
    ap.add_argument("--dummy", type=int, default=0)
    a = ap.parse_args()
    build(a.o, G=a.G, RES=a.RES, S=a.S, thr=a.thr, ldf=a.ldf, stf=a.stf, force=a.force, stamps=a.stamps, cpf=not a.nocpf, pk=a.pk, endbar=a.endbar, dummy=a.dummy)
```
